```python
import torch

def _softmax(x, axis=-1):
    return torch.softmax(x, dim=axis)
def _gelu(x):
    return torch.nn.functional.gelu(x, approximate="tanh")
def _silu(x):
    return torch.nn.functional.silu(x)
def _sigmoid(x):
    return torch.sigmoid(x)
def _layernorm(x, axis=-1, eps=1e-5):
    m = x.mean(dim=axis, keepdim=True)
    v = x.var(dim=axis, keepdim=True, unbiased=False)
    return (x - m) / torch.sqrt(v + eps)
def _scatter_add(tgt, idx, src, axis=0):
    return tgt.clone().index_add_(axis, idx, src)
def _segment_sum(src, seg, n):
    out = torch.zeros((n,) + src.shape[1:], dtype=src.dtype)
    return out.index_add_(0, seg, src)
def _pad(x, pw):
    flat = tuple(v for pair in reversed(pw) for v in pair)
    return torch.nn.functional.pad(x, flat)

kernel_name = 'standalone__mha_block_cached__near_ridge'

def setup_inputs():

    _w = (lambda a: (lambda t: t.to(torch.bfloat16) if t.is_floating_point() else t)(torch.as_tensor(a)))
    B, Sq, D = 8, 128, 576
    H, Sk, Dh = 32, 1024, 128
    return {
        "x": _w((lambda *s: torch.randn(*s, dtype=torch.bfloat16) * 0.8)(B, Sq, D)),
        "k_cache": _w((lambda *s: torch.randn(*s, dtype=torch.bfloat16) * 0.8)(B, H, Sk, Dh)),
        "v_cache": _w((lambda *s: torch.randn(*s, dtype=torch.bfloat16) * 0.05)(B, H, Sk, Dh)),
        "wq": _w((lambda *s: torch.randn(*s, dtype=torch.bfloat16) * 0.8)(D, H * Dh) * (D ** -0.5)),
        "wo": _w((lambda *s: torch.randn(*s, dtype=torch.bfloat16) * 0.05)(H * Dh, D) * ((H * Dh) ** -0.5)),
    }

def reference(x, k_cache, v_cache, wq, wo):
    B, Sq, D = x.shape
    H, Dh = 32, 128
    q = (lambda x, *d: x.permute(*d))((x @ wq).reshape(B, Sq, H, Dh), 0, 2, 1, 3)
    scores = torch.einsum("bhqd,bhkd->bhqk", q, k_cache) * (Dh ** -0.5)
    p = _softmax(scores, axis=-1)
    o = torch.einsum("bhqk,bhkd->bhqd", p, v_cache)
    return (lambda x, *d: x.permute(*d))(o, 0, 2, 1, 3).reshape(B, Sq, H * Dh) @ wo
```

```python
import sys

class Asm:
    def __init__(self):
        self.lines = []
        self.lbl = 0
    def __call__(self, s):
        self.lines.append("    " + s)
    def label(self, name):
        self.lines.append(name + ":")
    def newlabel(self, base):
        self.lbl += 1
        return f"L_{base}_{self.lbl}"
    def comment(self, s):
        self.lines.append("    ; " + s)
    def text(self):
        return "\n".join(self.lines) + "\n"

LDS_K = 0
LDS_V = 65536
LDS_STG = 131072
LDS_TOTAL = 163840

S_W = 3
SRD_X, SRD_WQ, SRD_K, SRD_V, SRD_O = 8, 12, 16, 20, 24
S_KOFF, S_VOFF = 28, 29
S_TMP0, S_TMP1, S_TMP2 = 30, 31, 48
S_C = 49
S_NC = 50
S_PTR = 32
V_TID = 0
V_KR = 1
V_VR = 9
V_KD = 13
V_VD = 17
V_MOLD, V_MNEW, V_L, V_ALPHA, V_T0, V_T1, V_NMC = 18, 19, 20, 21, 22, 23, 24
V_WR = 25
V_XOFF = 29
V_WD = 30
V_T2 = 31
V_O = 32
V_S = 96
V_P = 128
V_F = 144
ACC_OFF = 208
NAGPR = 144

SCALE_LOG2E = 0x3E02A39B if False else None

def f32bits(x):
    import struct
    return struct.unpack("<I", struct.pack("<f", x))[0]

import math
C_SM = (128 ** -0.5) * math.log2(math.e)

def gen_attn():
    a = Asm()
    a.lines.append(".globl attn_kernel\n.p2align 8\n.type attn_kernel,@function\nattn_kernel:")
    a("s_cmp_ge_u32 s2, 256")
    a("s_cbranch_scc1 L_attn_done")
    a(f"s_load_dwordx16 s[{S_PTR}:{S_PTR+15}], s[0:1], 0")
    a("v_lshrrev_b32 v1, 6, v0")
    a("s_nop 0")
    a(f"v_readfirstlane_b32 s{S_W}, v1")
    a("v_and_b32 v0, 63, v0")
    a("s_lshr_b32 s4, s2, 5")
    a("s_and_b32 s5, s2, 31")
    a("s_waitcnt lgkmcnt(0)")
    a("s_mul_i32 s6, s4, 147456")
    a(f"s_add_u32 s{SRD_X}, s{S_PTR}, s6")
    a(f"s_addc_u32 s{SRD_X+1}, s{S_PTR+1}, 0")
    a(f"s_mov_b32 s{SRD_X+2}, 147456")
    a(f"s_mov_b32 s{SRD_X+3}, 0x00020000")
    a("s_lshl_b32 s6, s5, 8")
    a(f"s_add_u32 s{SRD_WQ}, s{S_PTR+6}, s6")
    a(f"s_addc_u32 s{SRD_WQ+1}, s{S_PTR+7}, 0")
    a(f"s_mov_b32 s{SRD_WQ+2}, {575*8192+256}")
    a(f"s_mov_b32 s{SRD_WQ+3}, 0x00020000")
    a("s_lshl_b32 s6, s2, 18")
    a(f"s_add_u32 s{SRD_K}, s{S_PTR+2}, s6")
    a(f"s_addc_u32 s{SRD_K+1}, s{S_PTR+3}, 0")
    a(f"s_mov_b32 s{SRD_K+2}, 262144")
    a(f"s_mov_b32 s{SRD_K+3}, 0x00020000")
    a(f"s_add_u32 s{SRD_V}, s{S_PTR+4}, s6")
    a(f"s_addc_u32 s{SRD_V+1}, s{S_PTR+5}, 0")
    a(f"s_mov_b32 s{SRD_V+2}, 262144")
    a(f"s_mov_b32 s{SRD_V+3}, 0x00020000")
    a("s_lshl_b32 s6, s4, 20")
    a("s_lshl_b32 s7, s5, 8")
    a("s_add_u32 s6, s6, s7")
    a(f"s_add_u32 s{SRD_O}, s{S_PTR+14}, s6")
    a(f"s_addc_u32 s{SRD_O+1}, s{S_PTR+15}, 0")
    a(f"s_mov_b32 s{SRD_O+2}, {127*8192+256}")
    a(f"s_mov_b32 s{SRD_O+3}, 0x00020000")
    a(f"s_mov_b32 s{S_C}, 0x{f32bits(C_SM):08x}")
    a(f"s_mov_b32 s{S_NC}, 0x{f32bits(-C_SM):08x}")
    a("v_and_b32 v31, 31, v0")
    a("v_lshrrev_b32 v30, 5, v0")
    a(f"s_lshl_b32 s6, s{S_W}, 5")
    a("v_add_u32 v29, s6, v31")
    a("s_movk_i32 s7, 1152")
    a("v_mul_lo_u32 v29, v29, s7")
    a("v_lshlrev_b32 v28, 4, v30")
    a(f"v_add_u32 v{V_XOFF}, v29, v28")
    for t in range(36):
        a(f"buffer_load_dwordx4 a[{4*t}:{4*t+3}], v{V_XOFF}, s[{SRD_X}:{SRD_X+3}], 0 offen offset:{t*32}")
    a("v_and_b32 v28, 15, v31")
    for ks in range(8):
        a(f"v_or_b32 v27, {2*ks}, v30")
        a("v_xor_b32 v27, v27, v28")
        a("v_lshlrev_b32 v27, 4, v27")
        a(f"v_lshl_add_u32 v{V_KR+ks}, v31, 8, v27")
    a("v_bfe_u32 v27, v0, 2, 2")
    a("v_bfe_u32 v26, v0, 4, 1")
    a("v_and_b32 v25, 3, v0")
    a("v_lshlrev_b32 v24, 5, v26")
    a("v_lshrrev_b32 v23, 1, v25")
    a("v_lshl_add_u32 v24, v23, 4, v24")
    a("v_and_b32 v23, 1, v25")
    a("v_lshl_add_u32 v24, v23, 3, v24")
    a("v_lshl_add_u32 v23, v30, 2, v27")
    a("v_lshl_add_u32 v22, v23, 8, v24")
    a(f"v_add_u32 v22, {LDS_V}, v22")
    for db in range(4):
        a(f"v_xor_b32 v21, {db}, v27")
        a(f"v_lshl_add_u32 v{V_VR+db}, v21, 6, v22")
    a("v_lshl_add_u32 v23, v30, 3, v27")
    a("v_lshl_add_u32 v22, v23, 8, v24")
    a(f"v_add_u32 v22, {LDS_STG}, v22")
    tmpw = [21, 20, 19, 18]
    for db in range(4):
        a(f"v_xor_b32 v{tmpw[db]}, {db}, v27")
        a(f"v_lshl_add_u32 v{tmpw[db]}, v{tmpw[db]}, 6, v22")
    for db in range(4):
        a(f"v_mov_b32 v{V_WR+db}, v{tmpw[db]}")
    a("v_lshrrev_b32 v21, 4, v0")
    a("v_and_b32 v20, 15, v0")
    for i in range(4):
        a(f"v_add_u32 v19, {4*i}, v21")
        a("v_xor_b32 v19, v19, v20")
        a("v_lshlrev_b32 v19, 4, v19")
        a(f"v_lshl_add_u32 v{V_KD+i}, v21, 8, v19")
    a("v_lshlrev_b32 v19, 2, v21")
    a("v_xor_b32 v19, v19, v20")
    a("v_lshlrev_b32 v19, 4, v19")
    a(f"v_lshl_add_u32 v{V_VD}, v21, 8, v19")
    a(f"v_lshl_add_u32 v{V_WD}, v21, 13, v19")

    l_kv = a.newlabel("kvrole")
    l_pa = a.newlabel("phasea")
    a(f"s_cmp_ge_u32 s{S_W}, 2")
    a(f"s_cbranch_scc1 {l_kv}")
    a(f"s_lshl_b32 s{S_TMP0}, s{S_W}, 12")
    a(f"s_lshl_b32 s{S_TMP1}, s{S_W}, 17")
    def wq_issue(c):
        slot = c % 4
        for p in range(4):
            a(f"s_add_u32 s{S_TMP2}, s{S_TMP0}, {LDS_STG + slot*8192 + p*1024}")
            a(f"s_mov_b32 m0, s{S_TMP2}")
            a(f"s_add_u32 s{S_TMP2}, s{S_TMP1}, {(c*32 + 4*p)*8192}")
            a(f"buffer_load_dwordx4 v{V_WD}, s[{SRD_WQ}:{SRD_WQ+3}], s{S_TMP2} offen lds")
    for c in range(3):
        wq_issue(c)
    a(f"s_branch {l_pa}")
    a.label(l_kv)
    l_v3 = a.newlabel("vrole")
    a(f"s_cmp_eq_u32 s{S_W}, 3")
    a(f"s_cbranch_scc1 {l_v3}")
    for t in range(3):
        for qd in range(4):
            a(f"s_mov_b32 m0, {LDS_K + t*16384 + qd*4096}")
            a(f"s_mov_b32 s{S_TMP2}, {t*16384 + qd*4096}")
            for i in range(4):
                a(f"buffer_load_dwordx4 v{V_KD+i}, s[{SRD_K}:{SRD_K+3}], s{S_TMP2} offen offset:{i*1024} lds")
    a("s_waitcnt vmcnt(48)")
    a(f"s_branch {l_pa}")
    a.label(l_v3)
    for t in range(3):
        for qd in range(4):
            a(f"s_mov_b32 m0, {LDS_V + t*16384 + qd*4096}")
            a(f"s_mov_b32 s{S_TMP2}, {t*16384 + qd*4096}")
            for i in range(4):
                a(f"buffer_load_dwordx4 v{V_VD}, s[{SRD_V}:{SRD_V+3}], s{S_TMP2} offen offset:{i*1024} lds")
    a("s_waitcnt vmcnt(48)")
    a.label(l_pa)
    a(f"s_lshl_b32 s{S_TMP0}, s{S_W}, 12")
    a(f"s_lshl_b32 s{S_TMP1}, s{S_W}, 17")
    for c in range(18):
        slot = c % 4
        lsk = a.newlabel("paw")
        a(f"s_cmp_ge_u32 s{S_W}, 2")
        a(f"s_cbranch_scc1 {lsk}")
        n = 8 if c <= 15 else (4 if c == 16 else 0)
        a(f"s_waitcnt vmcnt({n})")
        a.label(lsk)
        a("s_barrier")
        if c + 3 <= 17:
            lsk2 = a.newlabel("pai")
            a(f"s_cmp_ge_u32 s{S_W}, 2")
            a(f"s_cbranch_scc1 {lsk2}")
            wq_issue(c + 3)
            a.label(lsk2)
        for tp in range(2):
            for db in range(4):
                f = V_F + (tp*4+db)*4
                off = slot*8192 + tp*4096
                a(f"ds_read_b64_tr_b16 v[{f}:{f+1}], v{V_WR+db} offset:{off}")
                a(f"ds_read_b64_tr_b16 v[{f+2}:{f+3}], v{V_WR+db} offset:{off+1024}")
        cnt = 16
        for tp in range(2):
            t = c*2 + tp
            for db in range(4):
                f = V_F + (tp*4+db)*4
                cnt -= 2
                a(f"s_waitcnt lgkmcnt({cnt})")
                acc = V_O + 16*db
                cin = "0" if t == 0 else f"v[{acc}:{acc+15}]"
                a(f"v_mfma_f32_32x32x16_bf16 v[{acc}:{acc+15}], v[{f}:{f+3}], a[{4*t}:{4*t+3}], {cin}")
    a("s_barrier")
    a("s_nop 15")
    VL31, VHH = 200, 201
    a(f"v_and_b32 v{VL31}, 31, v0")
    a(f"v_lshrrev_b32 v{VHH}, 5, v0")
    a(f"s_lshl_b32 s{S_TMP0}, s{S_W}, 13")
    a(f"v_and_b32 v{V_T0}, 15, v{VL31}")
    a(f"v_lshlrev_b32 v{V_T1}, 8, v{VL31}")
    a(f"v_lshl_add_u32 v{V_T1}, v{VHH}, 3, v{V_T1}")
    a(f"v_add_u32 v{V_T1}, s{S_TMP0}, v{V_T1}")
    a(f"v_add_u32 v{V_T1}, {LDS_STG}, v{V_T1}")
    for db in range(4):
        for i4 in range(4):
            r = V_O + 16*db + 4*i4
            pk = V_F + 2*(db*4+i4)
            a(f"v_cvt_pk_bf16_f32 v{pk}, v{r}, v{r+1}")
            a(f"v_cvt_pk_bf16_f32 v{pk+1}, v{r+2}, v{r+3}")
            a(f"v_xor_b32 v{V_T2}, {4*db+i4}, v{V_T0}")
            a(f"v_lshl_add_u32 v{V_T2}, v{V_T2}, 4, v{V_T1}")
            a(f"ds_write_b64 v{V_T2}, v[{pk}:{pk+1}]")
    a("s_waitcnt lgkmcnt(0)")
    a(f"v_lshlrev_b32 v{V_T1}, 8, v{VL31}")
    a(f"v_add_u32 v{V_T1}, s{S_TMP0}, v{V_T1}")
    a(f"v_add_u32 v{V_T1}, {LDS_STG}, v{V_T1}")
    for ks in range(8):
        a(f"v_or_b32 v{V_T2}, {2*ks}, v{VHH}")
        a(f"v_xor_b32 v{V_T2}, v{V_T2}, v{V_T0}")
        a(f"v_lshl_add_u32 v{V_T2}, v{V_T2}, 4, v{V_T1}")
        a(f"ds_read_b128 a[{4*ks}:{4*ks+3}], v{V_T2}")
    a(f"v_mov_b32 v{V_MOLD}, 0xff800000")
    a(f"v_mov_b32 v{V_L}, 0")
    for i in range(64):
        a(f"v_mov_b32 v{V_O+i}, 0")
    a(f"s_lshl_b32 s{S_TMP0}, s{S_W}, 12")
    a(f"s_add_u32 s{S_KOFF}, s{S_TMP0}, {3*16384}")
    a("s_waitcnt lgkmcnt(0)")
    for j in range(16):
        slot = j % 4
        n = 32 if j == 0 else 24 if j == 1 else 16 if j <= 13 else 8 if j == 14 else 0
        a(f"s_waitcnt vmcnt({n})")
        a("s_barrier")
        if j + 3 <= 15:
            ns = (j + 3) % 4
            a(f"s_add_u32 s{S_TMP1}, s{S_TMP0}, {LDS_K + ns*16384}")
            a(f"s_mov_b32 m0, s{S_TMP1}")
            a(f"s_add_u32 s{S_TMP1}, s{S_TMP0}, {LDS_V + ns*16384}")
            for i in range(4):
                a(f"buffer_load_dwordx4 v{V_KD+i}, s[{SRD_K}:{SRD_K+3}], s{S_KOFF} offen offset:{i*1024} lds")
            a(f"s_mov_b32 m0, s{S_TMP1}")
            a("s_nop 0")
            for i in range(4):
                a(f"buffer_load_dwordx4 v{V_VD}, s[{SRD_V}:{SRD_V+3}], s{S_KOFF} offen offset:{i*1024} lds")
            a(f"s_add_u32 s{S_KOFF}, s{S_KOFF}, 16384")
        for kb in range(2):
            for ks in range(8):
                f = V_F + (kb*8+ks)*4
                a(f"ds_read_b128 v[{f}:{f+3}], v{V_KR+ks} offset:{LDS_K + slot*16384 + kb*8192}")
        idx = 0
        for kb in range(2):
            for ks in range(8):
                f = V_F + (kb*8+ks)*4
                a(f"s_waitcnt lgkmcnt({15-idx})")
                idx += 1
                acc = V_S + 16*kb
                cin = "0" if ks == 0 else f"v[{acc}:{acc+15}]"
                a(f"v_mfma_f32_32x32x16_bf16 v[{acc}:{acc+15}], v[{f}:{f+3}], a[{4*ks}:{4*ks+3}], {cin}")
        a("s_nop 15")
        S = V_S
        a(f"v_max3_f32 v{V_T0}, v{S}, v{S+1}, v{S+2}")
        for i in range(3, 31, 2):
            a(f"v_max3_f32 v{V_T0}, v{V_T0}, v{S+i}, v{S+i+1}")
        a(f"v_max_f32 v{V_T0}, v{V_T0}, v{S+31}")
        a(f"v_mov_b32 v{V_T1}, v{V_T0}")
        a("s_nop 1")
        a(f"v_permlane32_swap_b32 v{V_T0}, v{V_T1}")
        a("s_nop 1")
        a(f"v_max3_f32 v{V_MNEW}, v{V_MOLD}, v{V_T0}, v{V_T1}")
        a(f"v_sub_f32 v{V_T0}, v{V_MOLD}, v{V_MNEW}")
        a(f"v_mul_f32 v{V_T0}, s{S_C}, v{V_T0}")
        a(f"v_exp_f32 v{V_ALPHA}, v{V_T0}")
        a(f"v_mul_f32 v{V_NMC}, s{S_NC}, v{V_MNEW}")
        a(f"v_mov_b32 v{V_MOLD}, v{V_MNEW}")
        for i in range(32):
            a(f"v_fma_f32 v{S+i}, v{S+i}, s{S_C}, v{V_NMC}")
        for i in range(32):
            a(f"v_exp_f32 v{S+i}, v{S+i}")
        a(f"v_mul_f32 v{V_L}, v{V_L}, v{V_ALPHA}")
        a(f"v_add_f32 v{V_T0}, v{S}, v{S+1}")
        a(f"v_add_f32 v{V_T1}, v{S+2}, v{S+3}")
        for i in range(4, 32, 2):
            a(f"v_add_f32 v{V_T0}, v{V_T0}, v{S+i}")
            a(f"v_add_f32 v{V_T1}, v{V_T1}, v{S+i+1}")
        a(f"v_add_f32 v{V_T0}, v{V_T0}, v{V_T1}")
        a(f"v_add_f32 v{V_L}, v{V_L}, v{V_T0}")
        for i in range(16):
            a(f"v_cvt_pk_bf16_f32 v{V_P+i}, v{S+2*i}, v{S+2*i+1}")
        for i in range(64):
            a(f"v_mul_f32 v{V_O+i}, v{V_O+i}, v{V_ALPHA}")
        for db in range(4):
            for kk in range(4):
                f = V_F + (db*4+kk)*4
                off = slot*16384 + kk*4096
                a(f"ds_read_b64_tr_b16 v[{f}:{f+1}], v{V_VR+db} offset:{off}")
                a(f"ds_read_b64_tr_b16 v[{f+2}:{f+3}], v{V_VR+db} offset:{off+2048}")
            if db == 1:
                pass
        a("s_waitcnt lgkmcnt(0)")
        for db in range(4):
            for kk in range(4):
                f = V_F + (db*4+kk)*4
                acc = V_O + 16*db
                a(f"v_mfma_f32_32x32x16_bf16 v[{acc}:{acc+15}], v[{f}:{f+3}], v[{V_P+4*kk}:{V_P+4*kk+3}], v[{acc}:{acc+15}]")
    a("s_nop 15")
    a(f"v_mov_b32 v{V_T1}, v{V_L}")
    a("s_nop 1")
    a(f"v_permlane32_swap_b32 v{V_L}, v{V_T1}")
    a("s_nop 1")
    a(f"v_add_f32 v{V_L}, v{V_L}, v{V_T1}")
    a(f"v_rcp_f32 v{V_L}, v{V_L}")
    a(f"s_lshl_b32 s{S_TMP0}, s{S_W}, 5")
    a("v_lshrrev_b32 v30, 5, v0")
    a("v_and_b32 v31, 31, v0")
    a(f"v_add_u32 v{V_T0}, s{S_TMP0}, v31")
    a(f"v_lshlrev_b32 v{V_T0}, 13, v{V_T0}")
    a(f"v_lshl_add_u32 v{V_T0}, v30, 3, v{V_T0}")
    for db in range(4):
        for i4 in range(4):
            r = V_O + 16*db + 4*i4
            pk = V_F + 2*(db*4+i4)
            for e in range(4):
                a(f"v_mul_f32 v{r+e}, v{r+e}, v{V_L}")
            a(f"v_cvt_pk_bf16_f32 v{pk}, v{r}, v{r+1}")
            a(f"v_cvt_pk_bf16_f32 v{pk+1}, v{r+2}, v{r+3}")
            a(f"buffer_store_dwordx2 v[{pk}:{pk+1}], v{V_T0}, s[{SRD_O}:{SRD_O+3}], 0 offen offset:{db*64+i4*16}")
    a.label("L_attn_done")
    a("s_endpgm")
    return a.text()

def gen_oproj():
    a = Asm()
    a.lines.append(".globl oproj_kernel\n.p2align 8\n.type oproj_kernel,@function\noproj_kernel:")
    SA, SB, SO = 8, 12, 16
    a("s_cmp_ge_u32 s2, 144")
    a("s_cbranch_scc1 L_oproj_done")
    a(f"s_load_dwordx16 s[{S_PTR}:{S_PTR+15}], s[0:1], 0")
    a("v_lshrrev_b32 v1, 6, v0")
    a("s_nop 0")
    a(f"v_readfirstlane_b32 s{S_W}, v1")
    a("v_and_b32 v0, 63, v0")
    a("s_mul_i32 s4, s2, 7282")
    a("s_lshr_b32 s4, s4, 16")
    a("s_mul_i32 s5, s4, 9")
    a("s_sub_u32 s5, s2, s5")
    a("s_waitcnt lgkmcnt(0)")
    a("s_lshl_b32 s6, s4, 19")
    a(f"s_add_u32 s{SA}, s{S_PTR+14}, s6")
    a(f"s_addc_u32 s{SA+1}, s{S_PTR+15}, 0")
    a(f"s_mov_b32 s{SA+2}, {64*8192}")
    a(f"s_mov_b32 s{SA+3}, 0x00020000")
    a("s_lshl_b32 s6, s5, 7")
    a(f"s_add_u32 s{SB}, s{S_PTR+8}, s6")
    a(f"s_addc_u32 s{SB+1}, s{S_PTR+9}, 0")
    a(f"s_mov_b32 s{SB+2}, {4095*1152+128}")
    a(f"s_mov_b32 s{SB+3}, 0x00020000")
    a("s_mul_i32 s6, s4, 73728")
    a("s_lshl_b32 s7, s5, 7")
    a("s_add_u32 s6, s6, s7")
    a(f"s_add_u32 s{SO}, s{S_PTR+10}, s6")
    a(f"s_addc_u32 s{SO+1}, s{S_PTR+11}, 0")
    a(f"s_mov_b32 s{SO+2}, {63*1152+128}")
    a(f"s_mov_b32 s{SO+3}, 0x00020000")
    a(f"s_lshr_b32 s6, s{S_W}, 1")
    a(f"s_and_b32 s7, s{S_W}, 1")
    a("v_and_b32 v31, 31, v0")
    a("v_lshrrev_b32 v30, 5, v0")
    a("s_lshl_b32 s28, s6, 5")
    a("v_add_u32 v29, s28, v31")
    a("v_and_b32 v28, 15, v31")
    for ks in range(8):
        a(f"v_or_b32 v27, {2*ks}, v30")
        a("v_xor_b32 v27, v27, v28")
        a("v_lshlrev_b32 v27, 4, v27")
        a(f"v_lshl_add_u32 v{1+ks}, v29, 8, v27")
    a("v_bfe_u32 v27, v0, 2, 2")
    a("v_bfe_u32 v26, v0, 4, 1")
    a("v_and_b32 v25, 3, v0")
    a("v_lshrrev_b32 v24, 1, v25")
    a("v_lshl_add_u32 v24, v26, 1, v24")
    a("s_lshl_b32 s28, s7, 2")
    a("v_add_u32 v24, s28, v24")
    a("v_lshrrev_b32 v23, 1, v27")
    a("v_lshlrev_b32 v23, 2, v23")
    a("v_xor_b32 v24, v24, v23")
    a("v_lshlrev_b32 v24, 4, v24")
    a("v_and_b32 v23, 1, v25")
    a("v_lshl_add_u32 v24, v23, 3, v24")
    a("v_lshl_add_u32 v23, v30, 3, v27")
    a("v_lshl_add_u32 v24, v23, 7, v24")
    a("v_add_u32 v9, 65536, v24")
    a("v_lshrrev_b32 v21, 4, v0")
    a("v_and_b32 v20, 15, v0")
    for i in range(4):
        a(f"v_add_u32 v19, {4*i}, v21")
        a("v_xor_b32 v19, v19, v20")
        a("v_lshlrev_b32 v19, 4, v19")
        a(f"v_lshl_add_u32 v{10+i}, v21, 13, v19")
    a("v_lshrrev_b32 v21, 3, v0")
    a("v_and_b32 v20, 7, v0")
    a("v_bfe_u32 v19, v21, 1, 1")
    a("v_lshlrev_b32 v19, 2, v19")
    a("v_xor_b32 v19, v19, v20")
    a("v_lshlrev_b32 v19, 4, v19")
    a("s_movk_i32 s28, 1152")
    a("v_mul_lo_u32 v21, v21, s28")
    a("v_add_u32 v14, v21, v19")
    a(f"s_lshl_b32 s29, s{S_W}, 12")
    a(f"s_lshl_b32 s30, s{S_W}, 17")
    a(f"s_mul_i32 s31, s{S_W}, {32*1152}")
    def issue(st):
        slot = st % 4
        for i in range(4):
            a(f"s_add_u32 s48, s29, {slot*16384 + i*1024}")
            a("s_mov_b32 m0, s48")
            a(f"s_add_u32 s48, s30, {i*4*8192 + st*256}")
            a(f"buffer_load_dwordx4 v{10+i}, s[{SA}:{SA+3}], s48 offen lds")
        for i in range(4):
            a(f"s_add_u32 s48, s29, {65536 + slot*16384 + i*1024}")
            a("s_mov_b32 m0, s48")
            a(f"s_add_u32 s48, s31, {(st*128 + 8*i)*1152}")
            a(f"buffer_load_dwordx4 v14, s[{SB}:{SB+3}], s48 offen lds")
    for st in range(3):
        issue(st)
    ACC = 32
    F = 48
    NST = 32
    for st in range(NST):
        slot = st % 4
        n = 16 if st <= NST-3 else (8 if st == NST-2 else 0)
        a(f"s_waitcnt vmcnt({n})")
        a("s_barrier")
        if st + 3 < NST:
            issue(st + 3)
        for ks in range(8):
            f = F + ks*8
            a(f"ds_read_b128 v[{f}:{f+3}], v{1+ks} offset:{slot*16384}")
            off = slot*16384 + ks*2048
            a(f"ds_read_b64_tr_b16 v[{f+4}:{f+5}], v9 offset:{off}")
            a(f"ds_read_b64_tr_b16 v[{f+6}:{f+7}], v9 offset:{off+512}")
        for ks in range(8):
            f = F + ks*8
            a(f"s_waitcnt lgkmcnt({21-3*ks if 21-3*ks <= 15 else 15})")
            cin = "0" if (st == 0 and ks == 0) else f"v[{ACC}:{ACC+15}]"
            a(f"v_mfma_f32_32x32x16_bf16 v[{ACC}:{ACC+15}], v[{f+4}:{f+7}], v[{f}:{f+3}], {cin}")
    a("s_nop 15")
    a(f"s_lshr_b32 s6, s{S_W}, 1")
    a(f"s_and_b32 s7, s{S_W}, 1")
    a("s_lshl_b32 s6, s6, 5")
    a("v_add_u32 v29, s6, v31")
    a("s_movk_i32 s28, 1152")
    a("v_mul_lo_u32 v29, v29, s28")
    a("v_lshl_add_u32 v29, v30, 3, v29")
    a("s_lshl_b32 s7, s7, 6")
    a("v_add_u32 v29, s7, v29")
    for i4 in range(4):
        r = ACC + 4*i4
        a(f"v_cvt_pk_bf16_f32 v{F+2*i4}, v{r}, v{r+1}")
        a(f"v_cvt_pk_bf16_f32 v{F+2*i4+1}, v{r+2}, v{r+3}")
        a(f"buffer_store_dwordx2 v[{F+2*i4}:{F+2*i4+1}], v29, s[{SO}:{SO+3}], 0 offen offset:{i4*16}")
    a.label("L_oproj_done")
    a("s_endpgm")
    return a.text()

HEADER = """; Kernarg layout for this problem (64 bytes, ptrs only, base s[0:1]):
; @launch kernel=attn_kernel grid=(256,1,1) block=(256,1,1) lds=163840
; @launch kernel=oproj_kernel grid=(144,1,1) block=(256,1,1) lds=131072
.amdgcn_target "amdgcn-amd-amdhsa--gfx950"
.text
"""

def main():
    out = HEADER + gen_attn() + gen_oproj()
    out += f""".section .rodata,"a"
.p2align 6
.amdhsa_kernel attn_kernel
  .amdhsa_next_free_vgpr {ACC_OFF+NAGPR}
  .amdhsa_next_free_sgpr 64
  .amdhsa_accum_offset {ACC_OFF}
  .amdhsa_group_segment_fixed_size 0
  .amdhsa_kernarg_size 64
  .amdhsa_user_sgpr_count 2
  .amdhsa_user_sgpr_kernarg_segment_ptr 1
  .amdhsa_system_sgpr_workgroup_id_x 1
.end_amdhsa_kernel
.p2align 6
.amdhsa_kernel oproj_kernel
  .amdhsa_next_free_vgpr 112
  .amdhsa_next_free_sgpr 64
  .amdhsa_accum_offset 112
  .amdhsa_group_segment_fixed_size 0
  .amdhsa_kernarg_size 64
  .amdhsa_user_sgpr_count 2
  .amdhsa_user_sgpr_kernarg_segment_ptr 1
  .amdhsa_system_sgpr_workgroup_id_x 1
.end_amdhsa_kernel
"""
    path = sys.argv[1] if len(sys.argv) > 1 else "standalone__mha_block_cached__near_ridge.s"
    open(path, "w").write(out)

main()
```

```python
import sys, os, math, struct
EXP = os.environ.get('EXP', '')
KVPOL = os.environ.get('KVPOL', 'nt')

class Asm:
    def __init__(self):
        self.lines = []
        self.lbl = 0
    def __call__(self, s):
        self.lines.append("    " + s)
    def label(self, name):
        self.lines.append(name + ":")
    def newlabel(self, base):
        self.lbl += 1
        return f"L_{base}_{self.lbl}"
    def comment(self, s):
        self.lines.append("    ; " + s)
    def text(self):
        return "\n".join(self.lines) + "\n"

def f32bits(x):
    return struct.unpack("<I", struct.pack("<f", x))[0]

LDS_K = 0
LDS_V = 65536
LDS_STG = 131072
S_W = 3
SRD_X, SRD_WQ, SRD_K, SRD_V, SRD_O = 8, 12, 16, 20, 24
S_KOFF, S_VOFF = 28, 29
S_TMP0, S_TMP1, S_TMP2 = 30, 31, 48
S_C, S_NC, S_ROT = 49, 50, 51
S_PTR = 32
V_KR = 1; V_VR = 9; V_KD = 13; V_VD = 17
V_MOLD, V_MNEW, V_L, V_ALPHA, V_T0, V_T1, V_NMC = 18, 19, 20, 21, 22, 23, 24
V_WR = 25; V_XOFF = 29; V_WD = 30; V_T2 = 31
V_O = 32
V_S = [96, 128]
V_P = 160
ACC_OFF = 176
A_Q = 0; A_VF = 32; A_KF = 96
NAGPR = 160
C_SM = (128 ** -0.5) * math.log2(math.e)

def gen_attn():
    a = Asm()
    a.lines.append(".globl attn_kernel\n.p2align 8\n.type attn_kernel,@function\nattn_kernel:")
    a("s_cmp_ge_u32 s2, 256")
    a("s_cbranch_scc1 L_attn_done")
    a(f"s_load_dwordx16 s[{S_PTR}:{S_PTR+15}], s[0:1], 0")
    a("v_lshrrev_b32 v1, 6, v0")
    a("s_nop 0")
    a(f"v_readfirstlane_b32 s{S_W}, v1")
    a("v_and_b32 v0, 63, v0")
    a("s_lshr_b32 s4, s2, 5")
    a("s_and_b32 s5, s2, 31")
    a("s_waitcnt lgkmcnt(0)")
    a("s_mul_i32 s6, s4, 147456")
    a(f"s_add_u32 s{SRD_X}, s{S_PTR}, s6")
    a(f"s_addc_u32 s{SRD_X+1}, s{S_PTR+1}, 0")
    a(f"s_mov_b32 s{SRD_X+2}, 147456")
    a(f"s_mov_b32 s{SRD_X+3}, 0x00020000")
    a("s_lshl_b32 s6, s5, 8")
    a(f"s_add_u32 s{SRD_WQ}, s{S_PTR+6}, s6")
    a(f"s_addc_u32 s{SRD_WQ+1}, s{S_PTR+7}, 0")
    a(f"s_mov_b32 s{SRD_WQ+2}, {575*8192+256}")
    a(f"s_mov_b32 s{SRD_WQ+3}, 0x00020000")
    a("s_lshl_b32 s6, s2, 18")
    a(f"s_add_u32 s{SRD_K}, s{S_PTR+2}, s6")
    a(f"s_addc_u32 s{SRD_K+1}, s{S_PTR+3}, 0")
    a(f"s_mov_b32 s{SRD_K+2}, 262144")
    a(f"s_mov_b32 s{SRD_K+3}, 0x00020000")
    a(f"s_add_u32 s{SRD_V}, s{S_PTR+4}, s6")
    a(f"s_addc_u32 s{SRD_V+1}, s{S_PTR+5}, 0")
    a(f"s_mov_b32 s{SRD_V+2}, 262144")
    a(f"s_mov_b32 s{SRD_V+3}, 0x00020000")
    a("s_lshl_b32 s6, s4, 20")
    a("s_lshl_b32 s7, s5, 8")
    a("s_add_u32 s6, s6, s7")
    a(f"s_add_u32 s{SRD_O}, s{S_PTR+14}, s6")
    a(f"s_addc_u32 s{SRD_O+1}, s{S_PTR+15}, 0")
    a(f"s_mov_b32 s{SRD_O+2}, {127*8192+256}")
    a(f"s_mov_b32 s{SRD_O+3}, 0x00020000")
    a(f"s_and_b32 s{S_ROT}, s2, 15")
    a(f"s_lshl_b32 s{S_ROT}, s{S_ROT}, 14")
    a(f"s_mov_b32 s{S_C}, 0x{f32bits(C_SM):08x}")
    a(f"s_mov_b32 s{S_NC}, 0x{f32bits(-C_SM):08x}")
    L31, HH = 96, 97
    a(f"v_and_b32 v{L31}, 31, v0")
    a(f"v_lshrrev_b32 v{HH}, 5, v0")
    a(f"s_lshl_b32 s6, s{S_W}, 5")
    a(f"v_add_u32 v98, s6, v{L31}")
    a("s_movk_i32 s7, 1152")
    a("v_mul_lo_u32 v98, v98, s7")
    a(f"v_lshl_add_u32 v{V_XOFF}, v{HH}, 4, v98")
    for t in range(36):
        a(f"buffer_load_dwordx4 a[{4*t}:{4*t+3}], v{V_XOFF}, s[{SRD_X}:{SRD_X+3}], 0 offen offset:{t*32}")
    a("v_lshrrev_b32 v99, 4, v0")
    a("v_and_b32 v100, 15, v0")
    a("v_lshlrev_b32 v101, 2, v99")
    a("v_xor_b32 v101, v101, v100")
    a("v_lshlrev_b32 v101, 4, v101")
    a(f"v_lshl_add_u32 v{V_VD}, v99, 8, v101")
    a(f"v_lshl_add_u32 v{V_WD}, v99, 13, v101")
    a(f"s_lshl_b32 s{S_TMP0}, s{S_W}, 11")
    a(f"s_lshl_b32 s{S_TMP1}, s{S_W}, 16")
    for c in range(18):
        for p in range(2):
            a(f"s_add_u32 s{S_TMP2}, s{S_TMP0}, {c*8192 + p*1024}")
            a(f"s_mov_b32 m0, s{S_TMP2}")
            a(f"s_add_u32 s{S_TMP2}, s{S_TMP1}, {(c*32 + 4*p)*8192}")
            a(f"buffer_load_dwordx4 v{V_WD}, s[{SRD_WQ}:{SRD_WQ+3}], s{S_TMP2} offen lds")
    for i in range(4):
        a(f"v_add_u32 v102, {4*i}, v99")
        a("v_xor_b32 v102, v102, v100")
        a("v_lshlrev_b32 v102, 4, v102")
        a(f"v_lshl_add_u32 v{V_KD+i}, v99, 8, v102")
    a(f"v_and_b32 v102, 15, v{L31}")
    for ks in range(8):
        a(f"v_or_b32 v103, {2*ks}, v{HH}")
        a("v_xor_b32 v103, v103, v102")
        a("v_lshlrev_b32 v103, 4, v103")
        a(f"v_lshl_add_u32 v{V_KR+ks}, v{L31}, 8, v103")
    a("v_bfe_u32 v103, v0, 2, 2")
    a("v_bfe_u32 v104, v0, 4, 1")
    a("v_and_b32 v105, 3, v0")
    a("v_lshlrev_b32 v106, 5, v104")
    a("v_lshrrev_b32 v107, 1, v105")
    a("v_lshl_add_u32 v106, v107, 4, v106")
    a("v_and_b32 v107, 1, v105")
    a("v_lshl_add_u32 v106, v107, 3, v106")
    a(f"v_lshl_add_u32 v107, v{HH}, 2, v103")
    a("v_lshl_add_u32 v108, v107, 8, v106")
    a(f"v_add_u32 v108, {LDS_V}, v108")
    for db in range(4):
        a(f"v_xor_b32 v109, {db}, v103")
        a(f"v_lshl_add_u32 v{V_VR+db}, v109, 6, v108")
    a(f"v_lshl_add_u32 v107, v{HH}, 3, v103")
    a("v_lshl_add_u32 v108, v107, 8, v106")
    for db in range(4):
        a(f"v_xor_b32 v109, {db}, v103")
        a(f"v_lshl_add_u32 v{V_WR+db}, v109, 6, v108")

    def kv_issue(which, tile, sreg_quarter):
        base = (LDS_K if which == 'K' else LDS_V) + (tile % 4) * 16384
        a(f"s_add_u32 s{S_TMP2}, s{sreg_quarter}, {base}")
        a(f"s_mov_b32 m0, s{S_TMP2}")
        a(f"s_add_u32 s{S_TMP2}, s{S_ROT}, {tile*16384}")
        a(f"s_and_b32 s{S_TMP2}, s{S_TMP2}, 0x3ffff")
        a(f"s_add_u32 s{S_TMP2}, s{S_TMP2}, s{sreg_quarter}")
        for i in range(4):
            if which == 'K':
                a(f"buffer_load_dwordx4 v{V_KD+i}, s[{SRD_K}:{SRD_K+3}], s{S_TMP2} offen offset:{i*1024} {KVPOL} lds")
            else:
                a(f"buffer_load_dwordx4 v{V_VD}, s[{SRD_V}:{SRD_V+3}], s{S_TMP2} offen offset:{i*1024} {KVPOL} lds")
    S_Q4 = 52
    a(f"s_lshl_b32 s{S_Q4}, s{S_W}, 12")
    WF = V_S[0]
    kv_plan = {1: ('K', 0), 2: ('K', 1), 3: ('K', 2), 4: ('K', 3), 5: ('V', 0), 6: ('V', 1)}
    kv_issued = 0
    for st in range(9):
        after = 2 * (18 - 2*(st+1)) + kv_issued
        a(f"s_waitcnt vmcnt({min(after,63)})")
        a("s_barrier")
        if st in kv_plan:
            kv_issue(kv_plan[st][0], kv_plan[st][1], S_Q4)
            kv_issued += 4
        if st == 4:
            for db in range(4):
                a(f"v_add_u32 v{V_WR+db}, 65536, v{V_WR+db}")
        if st == 8:
            for db in range(4):
                a(f"v_add_u32 v{V_WR+db}, 65536, v{V_WR+db}")
        base = (st % 4) * 16384
        for tp in range(4):
            for db in range(4):
                f = WF + (tp*4+db)*4
                off = base + tp*4096
                a(f"ds_read_b64_tr_b16 v[{f}:{f+1}], v{V_WR+db} offset:{off}")
                a(f"ds_read_b64_tr_b16 v[{f+2}:{f+3}], v{V_WR+db} offset:{off+1024}")
                if tp*4+db >= 6:
                    i = tp*4+db-6
                    tpp, dbb = i//4, i%4
                    ff = WF + i*4
                    a(f"s_waitcnt lgkmcnt(12)")
                    t = st*4 + tpp
                    acc = V_O + 16*dbb
                    cin = "0" if t == 0 else f"v[{acc}:{acc+15}]"
                    a(f"v_mfma_f32_32x32x16_bf16 v[{acc}:{acc+15}], v[{ff}:{ff+3}], a[{4*t}:{4*t+3}], {cin}")
        for i in range(10, 16):
            tpp, dbb = i//4, i%4
            ff = WF + i*4
            a(f"s_waitcnt lgkmcnt({2*(15-i)})")
            t = st*4 + tpp
            acc = V_O + 16*dbb
            a(f"v_mfma_f32_32x32x16_bf16 v[{acc}:{acc+15}], v[{ff}:{ff+3}], a[{4*t}:{4*t+3}], v[{acc}:{acc+15}]")
    a("s_barrier")
    a(f"v_and_b32 v{L31}, 31, v0")
    a(f"v_lshrrev_b32 v{HH}, 5, v0")
    a(f"s_lshl_b32 s{S_TMP0}, s{S_W}, 13")
    a(f"v_and_b32 v{V_T0}, 15, v{L31}")
    a(f"v_lshlrev_b32 v{V_T1}, 8, v{L31}")
    a(f"v_lshl_add_u32 v{V_T1}, v{HH}, 3, v{V_T1}")
    a(f"v_add_u32 v{V_T1}, s{S_TMP0}, v{V_T1}")
    a(f"v_add_u32 v{V_T1}, {LDS_STG}, v{V_T1}")
    a("s_nop 7")
    for db in range(4):
        for i4 in range(4):
            r = V_O + 16*db + 4*i4
            pk = V_P + 2*((db*4+i4) % 8)
            a(f"v_cvt_pk_bf16_f32 v{pk}, v{r}, v{r+1}")
            a(f"v_cvt_pk_bf16_f32 v{pk+1}, v{r+2}, v{r+3}")
            a(f"v_xor_b32 v{V_T2}, {4*db+i4}, v{V_T0}")
            a(f"v_lshl_add_u32 v{V_T2}, v{V_T2}, 4, v{V_T1}")
            a(f"ds_write_b64 v{V_T2}, v[{pk}:{pk+1}]")
    a("s_waitcnt lgkmcnt(0)")
    a(f"v_lshlrev_b32 v{V_T1}, 8, v{L31}")
    a(f"v_add_u32 v{V_T1}, s{S_TMP0}, v{V_T1}")
    a(f"v_add_u32 v{V_T1}, {LDS_STG}, v{V_T1}")
    for ks in range(8):
        a(f"v_or_b32 v{V_T2}, {2*ks}, v{HH}")
        a(f"v_xor_b32 v{V_T2}, v{V_T2}, v{V_T0}")
        a(f"v_lshl_add_u32 v{V_T2}, v{V_T2}, 4, v{V_T1}")
        a(f"ds_read_b128 a[{A_Q+4*ks}:{A_Q+4*ks+3}], v{V_T2}")
    a(f"v_mov_b32 v{V_MOLD}, 0xff800000")
    a(f"v_mov_b32 v{V_L}, 0")
    for i in range(64):
        a(f"v_mov_b32 v{V_O+i}, 0")
    a("s_waitcnt lgkmcnt(0)")

    def qk_ops(j, sreg):
        ops = []
        slot = j % 4
        for kb in range(2):
            for ks in range(8):
                f = A_KF + ((kb*8+ks) % 16)*4
                rd = [f"ds_read_b128 a[{f}:{f+3}], v{V_KR+ks} offset:{LDS_K + slot*16384 + kb*8192}"]
                acc = sreg + 16*kb
                cin = "0" if ks == 0 else f"v[{acc}:{acc+15}]"
                mf = f"v_mfma_f32_32x32x16_bf16 v[{acc}:{acc+15}], a[{f}:{f+3}], a[{A_Q+4*ks}:{A_Q+4*ks+3}], {cin}"
                ops.append((rd, mf))
        return ops
    def pv_ops(j):
        ops = []
        slot = j % 4
        for kk in range(4):
            for db in range(4):
                f = A_VF + ((kk*4+db) % 16)*4
                off = slot*16384 + kk*4096
                rd = [f"ds_read_b64_tr_b16 a[{f}:{f+1}], v{V_VR+db} offset:{off}",
                      f"ds_read_b64_tr_b16 a[{f+2}:{f+3}], v{V_VR+db} offset:{off+2048}"]
                acc = V_O + 16*db
                mf = f"v_mfma_f32_32x32x16_bf16 v[{acc}:{acc+15}], a[{f}:{f+3}], v[{V_P+4*kk}:{V_P+4*kk+3}], v[{acc}:{acc+15}]"
                ops.append((rd, mf))
        return ops
    def softmax_ops(S):
        p1 = []
        p1.append(f"v_max3_f32 v{V_T0}, v{S}, v{S+1}, v{S+2}")
        p1.append(f"v_max3_f32 v{V_T1}, v{S+3}, v{S+4}, v{S+5}")
        for i in range(6, 30, 4):
            p1.append(f"v_max3_f32 v{V_T0}, v{V_T0}, v{S+i}, v{S+i+1}")
            p1.append(f"v_max3_f32 v{V_T1}, v{V_T1}, v{S+i+2}, v{S+i+3}")
        p1.append(f"v_max3_f32 v{V_T0}, v{V_T0}, v{S+30}, v{S+31}")
        p1.append(f"v_max_f32 v{V_T0}, v{V_T0}, v{V_T1}")
        p1.append(f"v_mov_b32 v{V_T1}, v{V_T0}")
        p1.append("s_nop 1")
        p1.append(f"v_permlane32_swap_b32 v{V_T0}, v{V_T1}")
        p1.append("s_nop 1")
        p1.append(f"v_max3_f32 v{V_MNEW}, v{V_MOLD}, v{V_T0}, v{V_T1}")
        p1.append(f"v_sub_f32 v{V_T0}, v{V_MOLD}, v{V_MNEW}")
        p1.append(f"v_mul_f32 v{V_NMC}, s{S_NC}, v{V_MNEW}")
        p1.append(f"v_mul_f32 v{V_T0}, s{S_C}, v{V_T0}")
        p1.append(f"v_mov_b32 v{V_MOLD}, v{V_MNEW}")
        p1.append(f"v_exp_f32 v{V_ALPHA}, v{V_T0}")
        for i in range(32):
            p1.append(f"v_fma_f32 v{S+i}, v{S+i}, s{S_C}, v{V_NMC}")
            if i >= 1:
                p1.append(f"v_exp_f32 v{S+i-1}, v{S+i-1}")
        p1.append(f"v_exp_f32 v{S+31}, v{S+31}")
        p1.append(f"v_mul_f32 v{V_L}, v{V_L}, v{V_ALPHA}")
        p1.append(f"v_add_f32 v{V_T0}, v{S}, v{S+1}")
        p1.append(f"v_add_f32 v{V_T1}, v{S+2}, v{S+3}")
        for i in range(4, 32, 2):
            p1.append(f"v_add_f32 v{V_T0}, v{V_T0}, v{S+i}")
            p1.append(f"v_add_f32 v{V_T1}, v{V_T1}, v{S+i+1}")
        p1.append(f"v_add_f32 v{V_T0}, v{V_T0}, v{V_T1}")
        p1.append(f"v_add_f32 v{V_L}, v{V_L}, v{V_T0}")
        cv = [f"v_cvt_pk_bf16_f32 v{V_P+i}, v{S+2*i}, v{S+2*i+1}" for i in range(16)]
        rs = [f"v_mul_f32 v{V_O+i}, v{V_O+i}, v{V_ALPHA}" for i in range(64)]
        return p1, cv, rs

    def emit_stream(mops, valu_segments, ahead=5):
        vq = []
        for (mi, lst) in valu_segments:
            for v in lst:
                vq.append((mi, v))
        nm = len(mops)
        per = max(1, -(-len(vq) // max(nm, 1)))
        outstanding = []
        issued = 0
        need_seq = []
        rd_ptr = 0
        def issue_reads(upto):
            nonlocal rd_ptr, issued
            while rd_ptr <= upto and rd_ptr < nm:
                for r in mops[rd_ptr][0]:
                    a(r); issued += 1
                need_seq.append(issued)
                rd_ptr += 1
        issue_reads(ahead - 1)
        vi = 0
        for i in range(nm):
            issue_reads(i + ahead)
            later = issued - need_seq[i]
            a(f"s_waitcnt lgkmcnt({min(later,15)})")
            a(mops[i][1])
            cnt = 0
            while vi < len(vq) and cnt < per and vq[vi][0] <= i:
                a(vq[vi][1]); vi += 1; cnt += 1
        while vi < len(vq):
            a(vq[vi][1]); vi += 1

    a("s_waitcnt vmcnt(20)")
    a("s_barrier")
    emit_stream(qk_ops(0, V_S[0]), [])
    a("s_nop 7")
    issue_cnt = lambda i: (4 if i + 4 <= 15 else 0) + (4 if i + 2 <= 15 else 0)
    for j in range(16):
        a.comment(f"==== iteration {j}")
        if j == 0: n = 16
        elif j == 1: n = 12
        else: n = issue_cnt(j-2) + issue_cnt(j-1)
        a(f"s_waitcnt vmcnt({n})")
        a("s_barrier")
        if j + 4 <= 15: kv_issue('K', j + 4, S_Q4)
        if j + 2 <= 15: kv_issue('V', j + 2, S_Q4)
        if 'nocompute' in EXP:
            continue
        Scur = V_S[j % 2]; Snxt = V_S[(j+1) % 2]
        p1, cv, rs = softmax_ops(Scur)
        pv = pv_ops(j - 1) if j >= 1 else []
        qk = qk_ops(j + 1, Snxt) if j + 1 <= 15 else []
        npv = len(pv)
        segs = [(0, p1), (max(npv-1, 0), cv), (min(npv + 1, npv + len(qk)), rs)]
        emit_stream(pv + qk, segs)
    a("s_waitcnt vmcnt(0)")
    a("s_barrier")
    if 'nocompute' not in EXP:
        emit_stream(pv_ops(15), [])
    a("s_nop 15")
    a(f"v_mov_b32 v{V_T1}, v{V_L}")
    a("s_nop 1")
    a(f"v_permlane32_swap_b32 v{V_L}, v{V_T1}")
    a("s_nop 1")
    a(f"v_add_f32 v{V_L}, v{V_L}, v{V_T1}")
    a(f"v_rcp_f32 v{V_L}, v{V_L}")
    a(f"s_lshl_b32 s{S_TMP0}, s{S_W}, 5")
    a(f"v_and_b32 v{V_T2}, 31, v0")
    a(f"v_add_u32 v{V_T0}, s{S_TMP0}, v{V_T2}")
    a(f"v_lshlrev_b32 v{V_T0}, 13, v{V_T0}")
    a(f"v_lshrrev_b32 v{V_T2}, 5, v0")
    a(f"v_lshl_add_u32 v{V_T0}, v{V_T2}, 3, v{V_T0}")
    for db in range(4):
        for i4 in range(4):
            r = V_O + 16*db + 4*i4
            pk = V_S[0] + 2*(db*4+i4)
            for e in range(4):
                a(f"v_mul_f32 v{r+e}, v{r+e}, v{V_L}")
            a(f"v_cvt_pk_bf16_f32 v{pk}, v{r}, v{r+1}")
            a(f"v_cvt_pk_bf16_f32 v{pk+1}, v{r+2}, v{r+3}")
            a(f"buffer_store_dwordx2 v[{pk}:{pk+1}], v{V_T0}, s[{SRD_O}:{SRD_O+3}], 0 offen offset:{db*64+i4*16}")
    a.label("L_attn_done")
    a("s_endpgm")
    return a.text()

def gen_oproj():
    a = Asm()
    a.lines.append(".globl oproj_kernel\n.p2align 8\n.type oproj_kernel,@function\noproj_kernel:")
    SA, SB, SO = 8, 12, 16
    a("s_cmp_ge_u32 s2, 144")
    a("s_cbranch_scc1 L_oproj_done")
    a(f"s_load_dwordx16 s[{S_PTR}:{S_PTR+15}], s[0:1], 0")
    a("v_lshrrev_b32 v1, 6, v0")
    a("s_nop 0")
    a(f"v_readfirstlane_b32 s{S_W}, v1")
    a("v_and_b32 v0, 63, v0")
    a("s_and_b32 s6, s2, 7")
    a("s_lshr_b32 s7, s2, 3")
    a("s_cmp_ge_u32 s7, 9")
    a("s_cselect_b32 s4, 1, 0")
    a("s_mul_i32 s5, s4, 9")
    a("s_sub_u32 s5, s7, s5")
    a("s_lshl_b32 s6, s6, 1")
    a("s_add_u32 s4, s4, s6")
    a("s_waitcnt lgkmcnt(0)")
    a("s_lshl_b32 s6, s4, 19")
    a(f"s_add_u32 s{SA}, s{S_PTR+14}, s6")
    a(f"s_addc_u32 s{SA+1}, s{S_PTR+15}, 0")
    a(f"s_mov_b32 s{SA+2}, {64*8192}")
    a(f"s_mov_b32 s{SA+3}, 0x00020000")
    a("s_lshl_b32 s6, s5, 7")
    a(f"s_add_u32 s{SB}, s{S_PTR+8}, s6")
    a(f"s_addc_u32 s{SB+1}, s{S_PTR+9}, 0")
    a(f"s_mov_b32 s{SB+2}, {4095*1152+128}")
    a(f"s_mov_b32 s{SB+3}, 0x00020000")
    a("s_mul_i32 s6, s4, 73728")
    a("s_lshl_b32 s7, s5, 7")
    a("s_add_u32 s6, s6, s7")
    a(f"s_add_u32 s{SO}, s{S_PTR+10}, s6")
    a(f"s_addc_u32 s{SO+1}, s{S_PTR+11}, 0")
    a(f"s_mov_b32 s{SO+2}, {63*1152+128}")
    a(f"s_mov_b32 s{SO+3}, 0x00020000")
    a(f"s_lshr_b32 s6, s{S_W}, 1")
    a(f"s_and_b32 s7, s{S_W}, 1")
    a("v_and_b32 v31, 31, v0")
    a("v_lshrrev_b32 v30, 5, v0")
    a("s_lshl_b32 s28, s6, 5")
    a("v_add_u32 v29, s28, v31")
    a("v_and_b32 v28, 15, v31")
    for ks in range(8):
        a(f"v_or_b32 v27, {2*ks}, v30")
        a("v_xor_b32 v27, v27, v28")
        a("v_lshlrev_b32 v27, 4, v27")
        a(f"v_lshl_add_u32 v{1+ks}, v29, 8, v27")
    a("v_bfe_u32 v27, v0, 2, 2")
    a("v_bfe_u32 v26, v0, 4, 1")
    a("v_and_b32 v25, 3, v0")
    a("v_lshrrev_b32 v24, 1, v25")
    a("v_lshl_add_u32 v24, v26, 1, v24")
    a("s_lshl_b32 s28, s7, 2")
    a("v_add_u32 v24, s28, v24")
    a("v_lshrrev_b32 v23, 1, v27")
    a("v_lshlrev_b32 v23, 2, v23")
    a("v_xor_b32 v24, v24, v23")
    a("v_lshlrev_b32 v24, 4, v24")
    a("v_and_b32 v23, 1, v25")
    a("v_lshl_add_u32 v24, v23, 3, v24")
    a("v_lshl_add_u32 v23, v30, 3, v27")
    a("v_lshl_add_u32 v24, v23, 7, v24")
    a("v_add_u32 v9, 65536, v24")
    a("v_lshrrev_b32 v21, 4, v0")
    a("v_and_b32 v20, 15, v0")
    for i in range(4):
        a(f"v_add_u32 v19, {4*i}, v21")
        a("v_xor_b32 v19, v19, v20")
        a("v_lshlrev_b32 v19, 4, v19")
        a(f"v_lshl_add_u32 v{10+i}, v21, 13, v19")
    a("v_lshrrev_b32 v21, 3, v0")
    a("v_and_b32 v20, 7, v0")
    a("v_bfe_u32 v19, v21, 1, 1")
    a("v_lshlrev_b32 v19, 2, v19")
    a("v_xor_b32 v19, v19, v20")
    a("v_lshlrev_b32 v19, 4, v19")
    a("s_movk_i32 s28, 1152")
    a("v_mul_lo_u32 v21, v21, s28")
    a("v_add_u32 v14, v21, v19")
    a(f"s_lshl_b32 s29, s{S_W}, 12")
    a(f"s_lshl_b32 s30, s{S_W}, 17")
    a(f"s_mul_i32 s31, s{S_W}, {32*1152}")
    def issue(st):
        slot = st % 4
        for i in range(4):
            a(f"s_add_u32 s48, s29, {slot*16384 + i*1024}")
            a("s_mov_b32 m0, s48")
            a(f"s_add_u32 s48, s30, {i*4*8192 + st*256}")
            a(f"buffer_load_dwordx4 v{10+i}, s[{SA}:{SA+3}], s48 offen lds")
        for i in range(4):
            a(f"s_add_u32 s48, s29, {65536 + slot*16384 + i*1024}")
            a("s_mov_b32 m0, s48")
            a(f"s_add_u32 s48, s31, {(st*128 + 8*i)*1152}")
            a(f"buffer_load_dwordx4 v14, s[{SB}:{SB+3}], s48 offen lds")
    for st in range(3):
        issue(st)
    ACC = 32; F = 48; NST = 32
    for st in range(NST):
        slot = st % 4
        n = 16 if st <= NST-3 else (8 if st == NST-2 else 0)
        a(f"s_waitcnt vmcnt({n})")
        a("s_barrier")
        if st + 3 < NST:
            issue(st + 3)
        for ks in range(8):
            f = F + ks*8
            a(f"ds_read_b128 v[{f}:{f+3}], v{1+ks} offset:{slot*16384}")
            off = slot*16384 + ks*2048
            a(f"ds_read_b64_tr_b16 v[{f+4}:{f+5}], v9 offset:{off}")
            a(f"ds_read_b64_tr_b16 v[{f+6}:{f+7}], v9 offset:{off+512}")
        for ks in range(8):
            f = F + ks*8
            a(f"s_waitcnt lgkmcnt({min(21-3*ks,15)})")
            cin = "0" if (st == 0 and ks == 0) else f"v[{ACC}:{ACC+15}]"
            a(f"v_mfma_f32_32x32x16_bf16 v[{ACC}:{ACC+15}], v[{f+4}:{f+7}], v[{f}:{f+3}], {cin}")
    a("s_nop 15")
    a(f"s_lshr_b32 s6, s{S_W}, 1")
    a(f"s_and_b32 s7, s{S_W}, 1")
    a("s_lshl_b32 s6, s6, 5")
    a("v_add_u32 v29, s6, v31")
    a("s_movk_i32 s28, 1152")
    a("v_mul_lo_u32 v29, v29, s28")
    a("v_lshl_add_u32 v29, v30, 3, v29")
    a("s_lshl_b32 s7, s7, 6")
    a("v_add_u32 v29, s7, v29")
    for i4 in range(4):
        r = ACC + 4*i4
        a(f"v_cvt_pk_bf16_f32 v{F+2*i4}, v{r}, v{r+1}")
        a(f"v_cvt_pk_bf16_f32 v{F+2*i4+1}, v{r+2}, v{r+3}")
        a(f"buffer_store_dwordx2 v[{F+2*i4}:{F+2*i4+1}], v29, s[{SO}:{SO+3}], 0 offen offset:{i4*16}")
    a.label("L_oproj_done")
    a("s_endpgm")
    return a.text()

HEADER = open('header.txt').read()

def main():
    out = HEADER + gen_attn() + gen_oproj()
    out += f""".section .rodata,"a"
.p2align 6
.amdhsa_kernel attn_kernel
  .amdhsa_next_free_vgpr {ACC_OFF+NAGPR}
  .amdhsa_next_free_sgpr 64
  .amdhsa_accum_offset {ACC_OFF}
  .amdhsa_group_segment_fixed_size 0
  .amdhsa_kernarg_size 64
  .amdhsa_user_sgpr_count 2
  .amdhsa_user_sgpr_kernarg_segment_ptr 1
  .amdhsa_system_sgpr_workgroup_id_x 1
.end_amdhsa_kernel
.p2align 6
.amdhsa_kernel oproj_kernel
  .amdhsa_next_free_vgpr 112
  .amdhsa_next_free_sgpr 64
  .amdhsa_accum_offset 112
  .amdhsa_group_segment_fixed_size 0
  .amdhsa_kernarg_size 64
  .amdhsa_user_sgpr_count 2
  .amdhsa_user_sgpr_kernarg_segment_ptr 1
  .amdhsa_system_sgpr_workgroup_id_x 1
.end_amdhsa_kernel
"""
    path = sys.argv[1] if len(sys.argv) > 1 else "standalone__mha_block_cached__near_ridge.s"
    open(path, "w").write(out)

main()
```

```python
import sys, os, math, struct
EXP = os.environ.get('EXP', '')
KVPOL = os.environ.get('KVPOL', 'nt')
PROF = os.environ.get('PROF', '')
APOL = os.environ.get('APOL', '')

class Asm:
    def __init__(self):
        self.lines = []
        self.lbl = 0
    def __call__(self, s):
        self.lines.append("    " + s)
    def label(self, name):
        self.lines.append(name + ":")
    def newlabel(self, base):
        self.lbl += 1
        return f"L_{base}_{self.lbl}"
    def comment(self, s):
        self.lines.append("    ; " + s)
    def text(self):
        return "\n".join(self.lines) + "\n"

def f32bits(x):
    return struct.unpack("<I", struct.pack("<f", x))[0]

LDS_K = 0
LDS_V = 65536
LDS_STG = 131072
S_W = 3
SRD_X, SRD_WQ, SRD_K, SRD_V, SRD_O = 8, 12, 16, 20, 24
S_KOFF, S_VOFF = 28, 29
S_TMP0, S_TMP1, S_TMP2 = 30, 31, 48
S_C, S_NC, S_ROT = 49, 50, 51
S_PTR = 32
V_KR = 1; V_VR = 9; V_KD = 13; V_VD = 17
V_MOLD, V_MNEW, V_L, V_ALPHA, V_T0, V_T1, V_NMC = 18, 19, 20, 21, 22, 23, 24
V_WR = 25; V_XOFF = 29; V_WD = 30; V_T2 = 31
V_O = 32
V_S = [96, 128]
V_P = 160
ACC_OFF = 176
A_Q = 0; A_VF = 32; A_KF = 96
NAGPR = 160
C_SM = (128 ** -0.5) * math.log2(math.e)

def gen_attn():
    a = Asm()
    a.lines.append(".globl attn_kernel\n.p2align 8\n.type attn_kernel,@function\nattn_kernel:")
    a("s_cmp_ge_u32 s2, 256")
    a("s_cbranch_scc1 L_attn_done")
    a(f"s_load_dwordx16 s[{S_PTR}:{S_PTR+15}], s[0:1], 0")
    a("v_lshrrev_b32 v1, 6, v0")
    a("s_nop 0")
    a(f"v_readfirstlane_b32 s{S_W}, v1")
    a("v_and_b32 v0, 63, v0")
    stamp_n = [0]
    def stamp():
        if PROF:
            a(f"s_memtime s[{64+2*stamp_n[0]}:{65+2*stamp_n[0]}]")
            stamp_n[0] += 1
    if PROF:
        a("s_memrealtime s[98:99]")
    stamp()
    MAP = os.environ.get('MAP', '2')
    if MAP == '0':
        a("s_lshr_b32 s4, s2, 5")
        a("s_and_b32 s5, s2, 31")
    else:
        a("s_and_b32 s4, s2, 6")
        a("s_lshr_b32 s5, s2, 7")
        a("s_or_b32 s4, s4, s5")
        a("s_and_b32 s5, s2, 1")
        a("s_lshl_b32 s5, s5, 4")
        a("s_bfe_u32 s6, s2, 0x40003")
        a("s_or_b32 s5, s5, s6")
    a("s_lshl_b32 s6, s4, 5")
    a("s_or_b32 s53, s6, s5")
    a("s_waitcnt lgkmcnt(0)")
    if PROF == 'S': stamp()
    a("s_mul_i32 s6, s4, 147456")
    a(f"s_add_u32 s{SRD_X}, s{S_PTR}, s6")
    a(f"s_addc_u32 s{SRD_X+1}, s{S_PTR+1}, 0")
    a(f"s_mov_b32 s{SRD_X+2}, 147456")
    a(f"s_mov_b32 s{SRD_X+3}, 0x00020000")
    a("s_lshl_b32 s6, s5, 8")
    a(f"s_add_u32 s{SRD_WQ}, s{S_PTR+6}, s6")
    a(f"s_addc_u32 s{SRD_WQ+1}, s{S_PTR+7}, 0")
    a(f"s_mov_b32 s{SRD_WQ+2}, {575*8192+256}")
    a(f"s_mov_b32 s{SRD_WQ+3}, 0x00020000")
    a("s_lshl_b32 s6, s53, 18")
    a(f"s_add_u32 s{SRD_K}, s{S_PTR+2}, s6")
    a(f"s_addc_u32 s{SRD_K+1}, s{S_PTR+3}, 0")
    a(f"s_mov_b32 s{SRD_K+2}, 262144")
    a(f"s_mov_b32 s{SRD_K+3}, 0x00020000")
    a(f"s_add_u32 s{SRD_V}, s{S_PTR+4}, s6")
    a(f"s_addc_u32 s{SRD_V+1}, s{S_PTR+5}, 0")
    a(f"s_mov_b32 s{SRD_V+2}, 262144")
    a(f"s_mov_b32 s{SRD_V+3}, 0x00020000")
    a("s_lshl_b32 s6, s4, 20")
    a("s_lshl_b32 s7, s5, 8")
    a("s_add_u32 s6, s6, s7")
    a(f"s_add_u32 s{SRD_O}, s{S_PTR+14}, s6")
    a(f"s_addc_u32 s{SRD_O+1}, s{S_PTR+15}, 0")
    a(f"s_mov_b32 s{SRD_O+2}, {127*8192+256}")
    a(f"s_mov_b32 s{SRD_O+3}, 0x00020000")
    a(f"s_and_b32 s{S_ROT}, s2, 15")
    a(f"s_lshl_b32 s{S_ROT}, s{S_ROT}, 14")
    a(f"s_mov_b32 s{S_C}, 0x{f32bits(C_SM):08x}")
    a(f"s_mov_b32 s{S_NC}, 0x{f32bits(-C_SM):08x}")
    L31, HH = 96, 97
    V_XD = V_XOFF
    V_XR = 164
    V_XA, V_WA = 168, 172
    a(f"v_and_b32 v{L31}, 31, v0")
    a(f"v_lshrrev_b32 v{HH}, 5, v0")
    a("v_lshrrev_b32 v99, 4, v0")
    a("v_and_b32 v100, 15, v0")
    a("v_lshlrev_b32 v101, 2, v99")
    a("v_xor_b32 v101, v101, v100")
    a("v_lshlrev_b32 v101, 4, v101")
    a(f"v_lshl_add_u32 v{V_VD}, v99, 8, v101")
    a(f"v_lshl_add_u32 v{V_WD}, v99, 13, v101")
    for i in range(4):
        a(f"v_add_u32 v102, {4*i}, v99")
        a("v_xor_b32 v102, v102, v100")
        a("v_lshlrev_b32 v102, 4, v102")
        a(f"v_lshl_add_u32 v{V_KD+i}, v99, 8, v102")
    a("v_lshrrev_b32 v102, 3, v0")
    a("v_and_b32 v103, 7, v0")
    a("v_xor_b32 v103, v103, v102")
    a("v_lshlrev_b32 v103, 4, v103")
    a("s_movk_i32 s7, 1152")
    a("v_mul_lo_u32 v102, v102, s7")
    a(f"v_add_u32 v{V_XD}, v102, v103")
    S_H8 = 52
    a(f"s_and_b32 s{S_H8}, s{S_W}, 1")
    a(f"s_lshl_b32 s{S_H8}, s{S_H8}, 13")
    S_XG, S_WG = 54, 55
    a(f"s_and_b32 s{S_XG}, s{S_W}, 1")
    a(f"s_mul_i32 s{S_WG}, s{S_XG}, {32*8192}")
    a(f"s_mul_i32 s{S_XG}, s{S_XG}, {64*1152}")

    def kv_issue(which, tile):
        base = (LDS_K if which == 'K' else LDS_V) + (tile % 4) * 16384
        for g in range(2):
            a(f"s_add_u32 s{S_TMP2}, s{S_H8}, {base + g*4096}")
            a(f"s_mov_b32 m0, s{S_TMP2}")
            a(f"s_add_u32 s{S_TMP2}, s{S_ROT}, {tile*16384}")
            a(f"s_and_b32 s{S_TMP2}, s{S_TMP2}, 0x3ffff")
            a(f"s_add_u32 s{S_TMP2}, s{S_TMP2}, s{S_H8}")
            if g: a(f"s_add_u32 s{S_TMP2}, s{S_TMP2}, 4096")
            for n in range(4):
                if which == 'K':
                    a(f"buffer_load_dwordx4 v{V_KD+n}, s[{SRD_K}:{SRD_K+3}], s{S_TMP2} offen offset:{n*1024} {KVPOL} lds")
                else:
                    a(f"buffer_load_dwordx4 v{V_VD}, s[{SRD_V}:{SRD_V+3}], s{S_TMP2} offen offset:{n*1024} {KVPOL} lds")
    ABUF = [(49152, 81920), (98304, 114688), (131072, 147456)]
    def a_issue(st):
        xreg, wreg = ABUF[st % 3]
        for n in range(8):
            a(f"s_add_u32 s{S_TMP2}, s{S_H8}, {xreg + n*1024}")
            a(f"s_mov_b32 m0, s{S_TMP2}")
            a(f"s_add_u32 s{S_TMP2}, s{S_XG}, {8*n*1152 + st*128}")
            a(f"buffer_load_dwordx4 v{V_XD}, s[{SRD_X}:{SRD_X+3}], s{S_TMP2} offen {APOL} lds")
        for n in range(8):
            a(f"s_add_u32 s{S_TMP2}, s{S_H8}, {wreg + n*1024}")
            a(f"s_mov_b32 m0, s{S_TMP2}")
            a(f"s_add_u32 s{S_TMP2}, s{S_WG}, {(st*64 + 4*n)*8192}")
            a(f"buffer_load_dwordx4 v{V_WD}, s[{SRD_WQ}:{SRD_WQ+3}], s{S_TMP2} offen {APOL} lds")
    def role(is_kv, fn):
        lb = a.newlabel("role")
        a(f"s_cmp_lt_u32 s{S_W}, 2")
        a(f"s_cbranch_scc{1 if is_kv else 0} {lb}")
        fn()
        a.label(lb)
    role(False, lambda: [a_issue(st) for st in range(3)])
    role(True, lambda: [kv_issue(*t) for t in (('K',0),('K',1),('K',2),('V',0))])
    if PROF == 'S': stamp()
    a(f"v_and_b32 v102, 15, v{L31}")
    for ks in range(8):
        a(f"v_or_b32 v103, {2*ks}, v{HH}")
        a("v_xor_b32 v103, v103, v102")
        a("v_lshlrev_b32 v103, 4, v103")
        a(f"v_lshl_add_u32 v{V_KR+ks}, v{L31}, 8, v103")
    a(f"s_lshl_b32 s6, s{S_W}, 5")
    a(f"v_add_u32 v102, s6, v{L31}")
    a(f"v_and_b32 v104, 7, v{L31}")
    for tp in range(4):
        a(f"v_or_b32 v103, {2*tp}, v{HH}")
        a("v_xor_b32 v103, v103, v104")
        a("v_lshlrev_b32 v103, 4, v103")
        a(f"v_lshl_add_u32 v{V_XR+tp}, v102, 7, v103")
    a("v_bfe_u32 v103, v0, 2, 2")
    a("v_bfe_u32 v104, v0, 4, 1")
    a("v_and_b32 v105, 3, v0")
    a("v_lshlrev_b32 v106, 5, v104")
    a("v_lshrrev_b32 v107, 1, v105")
    a("v_lshl_add_u32 v106, v107, 4, v106")
    a("v_and_b32 v107, 1, v105")
    a("v_lshl_add_u32 v106, v107, 3, v106")
    a(f"v_lshl_add_u32 v107, v{HH}, 2, v103")
    a("v_lshl_add_u32 v108, v107, 8, v106")
    a(f"v_add_u32 v108, {LDS_V}, v108")
    for db in range(4):
        a(f"v_xor_b32 v109, {db}, v103")
        a(f"v_lshl_add_u32 v{V_VR+db}, v109, 6, v108")
    a(f"v_lshl_add_u32 v107, v{HH}, 3, v103")
    a("v_lshl_add_u32 v108, v107, 8, v106")
    for db in range(4):
        a(f"v_xor_b32 v109, {db}, v103")
        a(f"v_lshl_add_u32 v{V_WR+db}, v109, 6, v108")

    def emit_stream(mops, valu_segments, ahead=5):
        vq = []
        for (mi, lst) in valu_segments:
            for v in lst:
                vq.append((mi, v))
        nm = len(mops)
        per = max(1, -(-len(vq) // max(nm, 1)))
        issued = 0
        need_seq = []
        rd_ptr = 0
        def issue_reads(upto):
            nonlocal rd_ptr, issued
            while rd_ptr <= upto and rd_ptr < nm:
                for r in mops[rd_ptr][0]:
                    a(r); issued += 1
                need_seq.append(issued)
                rd_ptr += 1
        issue_reads(ahead - 1)
        vi = 0
        for i in range(nm):
            issue_reads(i + ahead)
            later = issued - need_seq[i]
            a(f"s_waitcnt lgkmcnt({min(later,15)})")
            a(mops[i][1])
            cnt = 0
            while vi < len(vq) and cnt < per and vq[vi][0] <= i:
                a(vq[vi][1]); vi += 1; cnt += 1
        while vi < len(vq):
            a(vq[vi][1]); vi += 1

    WF = V_S[0]
    XF = A_KF
    for st in range(9):
        xreg, wreg = ABUF[st % 3]
        for i in range(4):
            a(f"v_add_u32 v{V_XA+i}, {xreg}, v{V_XR+i}")
            a(f"v_add_u32 v{V_WA+i}, {wreg}, v{V_WR+i}")
        role(False, lambda: a(f"s_waitcnt vmcnt({16 if st < 8 else 0})"))
        if PROF == 'A' or (PROF == 'S' and st in (0,1,8)): stamp()
        a("s_barrier")
        if st >= 1 and st + 2 <= 8:
            role(False, lambda: a_issue(st + 2))
        if st == 7:
            role(True, lambda: [kv_issue('K', 3), kv_issue('V', 1)])
        mops = []
        for tp in range(4):
            for db in range(4):
                f = WF + (tp*4+db)*4
                rd = []
                if db == 0:
                    rd.append(f"ds_read_b128 a[{XF+4*tp}:{XF+4*tp+3}], v{V_XA+tp}")
                rd.append(f"ds_read_b64_tr_b16 v[{f}:{f+1}], v{V_WA+db} offset:{tp*4096}")
                rd.append(f"ds_read_b64_tr_b16 v[{f+2}:{f+3}], v{V_WA+db} offset:{tp*4096+1024}")
                acc = V_O + 16*db
                cin = "0" if (st == 0 and tp == 0) else f"v[{acc}:{acc+15}]"
                mops.append((rd, f"v_mfma_f32_32x32x16_bf16 v[{acc}:{acc+15}], v[{f}:{f+3}], a[{XF+4*tp}:{XF+4*tp+3}], {cin}"))
        emit_stream(mops, [], ahead=5)
    stamp()
    a("s_barrier")
    a(f"s_lshl_b32 s{S_TMP0}, s{S_W}, 13")
    a(f"v_and_b32 v{L31}, 31, v0")
    a(f"v_lshrrev_b32 v{HH}, 5, v0")
    a(f"v_and_b32 v{V_T0}, 15, v{L31}")
    a(f"v_lshlrev_b32 v{V_T1}, 8, v{L31}")
    a(f"v_lshl_add_u32 v{V_T1}, v{HH}, 3, v{V_T1}")
    a(f"v_add_u32 v{V_T1}, s{S_TMP0}, v{V_T1}")
    a(f"v_add_u32 v{V_T1}, {LDS_STG}, v{V_T1}")
    a("s_nop 7")
    for db in range(4):
        for i4 in range(4):
            r = V_O + 16*db + 4*i4
            pk = V_P + 2*((db*4+i4) % 8)
            a(f"v_cvt_pk_bf16_f32 v{pk}, v{r}, v{r+1}")
            a(f"v_cvt_pk_bf16_f32 v{pk+1}, v{r+2}, v{r+3}")
            a(f"v_xor_b32 v{V_T2}, {4*db+i4}, v{V_T0}")
            a(f"v_lshl_add_u32 v{V_T2}, v{V_T2}, 4, v{V_T1}")
            a(f"ds_write_b64 v{V_T2}, v[{pk}:{pk+1}]")
    a("s_waitcnt lgkmcnt(0)")
    a(f"v_lshlrev_b32 v{V_T1}, 8, v{L31}")
    a(f"v_add_u32 v{V_T1}, s{S_TMP0}, v{V_T1}")
    a(f"v_add_u32 v{V_T1}, {LDS_STG}, v{V_T1}")
    for ks in range(8):
        a(f"v_or_b32 v{V_T2}, {2*ks}, v{HH}")
        a(f"v_xor_b32 v{V_T2}, v{V_T2}, v{V_T0}")
        a(f"v_lshl_add_u32 v{V_T2}, v{V_T2}, 4, v{V_T1}")
        a(f"ds_read_b128 a[{A_Q+4*ks}:{A_Q+4*ks+3}], v{V_T2}")
    a(f"v_mov_b32 v{V_MOLD}, 0xff800000")
    a(f"v_mov_b32 v{V_L}, 0")
    for i in range(64):
        a(f"v_mov_b32 v{V_O+i}, 0")
    a("s_waitcnt lgkmcnt(0)")

    def qk_ops(j, sreg):
        ops = []
        slot = j % 4
        for kb in range(2):
            for ks in range(8):
                f = A_KF + ((kb*8+ks) % 16)*4
                rd = [f"ds_read_b128 a[{f}:{f+3}], v{V_KR+ks} offset:{LDS_K + slot*16384 + kb*8192}"]
                acc = sreg + 16*kb
                cin = "0" if ks == 0 else f"v[{acc}:{acc+15}]"
                mf = f"v_mfma_f32_32x32x16_bf16 v[{acc}:{acc+15}], a[{f}:{f+3}], a[{A_Q+4*ks}:{A_Q+4*ks+3}], {cin}"
                ops.append((rd, mf))
        return ops
    def pv_ops(j):
        ops = []
        slot = j % 4
        for kk in range(4):
            for db in range(4):
                f = A_VF + ((kk*4+db) % 16)*4
                off = slot*16384 + kk*4096
                rd = [f"ds_read_b64_tr_b16 a[{f}:{f+1}], v{V_VR+db} offset:{off}",
                      f"ds_read_b64_tr_b16 a[{f+2}:{f+3}], v{V_VR+db} offset:{off+2048}"]
                acc = V_O + 16*db
                mf = f"v_mfma_f32_32x32x16_bf16 v[{acc}:{acc+15}], a[{f}:{f+3}], v[{V_P+4*kk}:{V_P+4*kk+3}], v[{acc}:{acc+15}]"
                ops.append((rd, mf))
        return ops
    def softmax_ops(S):
        p1 = []
        p1.append(f"v_max3_f32 v{V_T0}, v{S}, v{S+1}, v{S+2}")
        p1.append(f"v_max3_f32 v{V_T1}, v{S+3}, v{S+4}, v{S+5}")
        for i in range(6, 30, 4):
            p1.append(f"v_max3_f32 v{V_T0}, v{V_T0}, v{S+i}, v{S+i+1}")
            p1.append(f"v_max3_f32 v{V_T1}, v{V_T1}, v{S+i+2}, v{S+i+3}")
        p1.append(f"v_max3_f32 v{V_T0}, v{V_T0}, v{S+30}, v{S+31}")
        p1.append(f"v_max_f32 v{V_T0}, v{V_T0}, v{V_T1}")
        p1.append(f"v_mov_b32 v{V_T1}, v{V_T0}")
        p1.append("s_nop 1")
        p1.append(f"v_permlane32_swap_b32 v{V_T0}, v{V_T1}")
        p1.append("s_nop 1")
        p1.append(f"v_max3_f32 v{V_MNEW}, v{V_MOLD}, v{V_T0}, v{V_T1}")
        p1.append(f"v_sub_f32 v{V_T0}, v{V_MOLD}, v{V_MNEW}")
        p1.append(f"v_mul_f32 v{V_NMC}, s{S_NC}, v{V_MNEW}")
        p1.append(f"v_mul_f32 v{V_T0}, s{S_C}, v{V_T0}")
        p1.append(f"v_mov_b32 v{V_MOLD}, v{V_MNEW}")
        p1.append(f"v_exp_f32 v{V_ALPHA}, v{V_T0}")
        for i in range(32):
            p1.append(f"v_fma_f32 v{S+i}, v{S+i}, s{S_C}, v{V_NMC}")
            if i >= 1:
                p1.append(f"v_exp_f32 v{S+i-1}, v{S+i-1}")
        p1.append(f"v_exp_f32 v{S+31}, v{S+31}")
        p1.append(f"v_mul_f32 v{V_L}, v{V_L}, v{V_ALPHA}")
        p1.append(f"v_add_f32 v{V_T0}, v{S}, v{S+1}")
        p1.append(f"v_add_f32 v{V_T1}, v{S+2}, v{S+3}")
        for i in range(4, 32, 2):
            p1.append(f"v_add_f32 v{V_T0}, v{V_T0}, v{S+i}")
            p1.append(f"v_add_f32 v{V_T1}, v{V_T1}, v{S+i+1}")
        p1.append(f"v_add_f32 v{V_T0}, v{V_T0}, v{V_T1}")
        p1.append(f"v_add_f32 v{V_L}, v{V_L}, v{V_T0}")
        cv = [f"v_cvt_pk_bf16_f32 v{V_P+i}, v{S+2*i}, v{S+2*i+1}" for i in range(16)]
        rs = [f"v_mul_f32 v{V_O+i}, v{V_O+i}, v{V_ALPHA}" for i in range(64)]
        return p1, cv, rs

    a("s_waitcnt vmcnt(40)")
    a("s_barrier")
    emit_stream(qk_ops(0, V_S[0]), [])
    a("s_nop 7")
    issue_cnt = lambda i: (8 if i + 4 <= 15 else 0) + (8 if i + 2 <= 15 else 0)
    for j in range(16):
        a.comment(f"==== iteration {j}")
        if j % 2 == 0 and PROF == '1': stamp()
        if j == 0: n = 32
        elif j == 1: n = 16 + issue_cnt(0)
        else: n = issue_cnt(j-2) + issue_cnt(j-1)
        a(f"s_waitcnt vmcnt({n})")
        a("s_barrier")
        def iss():
            if j + 4 <= 15: kv_issue('K', j + 4)
            if j + 2 <= 15: kv_issue('V', j + 2)
        if j + 2 <= 15: role(True, iss)
        if 'nocompute' in EXP:
            continue
        Scur = V_S[j % 2]; Snxt = V_S[(j+1) % 2]
        p1, cv, rs = softmax_ops(Scur)
        pv = pv_ops(j - 1) if j >= 1 else []
        qk = qk_ops(j + 1, Snxt) if j + 1 <= 15 else []
        npv = len(pv)
        segs = [(0, p1), (max(npv-1, 0), cv), (min(npv + 1, npv + len(qk)), rs)]
        emit_stream(pv + qk, segs)
    a("s_waitcnt vmcnt(0)")
    a("s_barrier")
    if 'nocompute' not in EXP:
        emit_stream(pv_ops(15), [])
    stamp()
    a("s_nop 15")
    a(f"v_mov_b32 v{V_T1}, v{V_L}")
    a("s_nop 1")
    a(f"v_permlane32_swap_b32 v{V_L}, v{V_T1}")
    a("s_nop 1")
    a(f"v_add_f32 v{V_L}, v{V_L}, v{V_T1}")
    a(f"v_rcp_f32 v{V_L}, v{V_L}")
    a(f"s_lshl_b32 s{S_TMP0}, s{S_W}, 5")
    a(f"v_and_b32 v{V_T2}, 31, v0")
    a(f"v_add_u32 v{V_T0}, s{S_TMP0}, v{V_T2}")
    a(f"v_lshlrev_b32 v{V_T0}, 13, v{V_T0}")
    a(f"v_lshrrev_b32 v{V_T2}, 5, v0")
    a(f"v_lshl_add_u32 v{V_T0}, v{V_T2}, 3, v{V_T0}")
    for db in range(4):
        for i4 in range(4):
            r = V_O + 16*db + 4*i4
            pk = V_S[0] + 2*(db*4+i4)
            for e in range(4):
                a(f"v_mul_f32 v{r+e}, v{r+e}, v{V_L}")
            a(f"v_cvt_pk_bf16_f32 v{pk}, v{r}, v{r+1}")
            a(f"v_cvt_pk_bf16_f32 v{pk+1}, v{r+2}, v{r+3}")
            a(f"buffer_store_dwordx2 v[{pk}:{pk+1}], v{V_T0}, s[{SRD_O}:{SRD_O+3}], 0 offen offset:{db*64+i4*16}")
    if PROF:
        stamp()
        a("s_waitcnt vmcnt(0) lgkmcnt(0)")
        a(f"s_lshl_b32 s6, s2, 8")
        a(f"s_add_u32 s6, s6, 0x1000000")
        a(f"s_add_u32 s{SRD_X}, s{S_PTR+14}, s6")
        a(f"s_addc_u32 s{SRD_X+1}, s{S_PTR+15}, 0")
        a(f"s_mov_b32 s{SRD_X+2}, 256")
        a(f"s_lshl_b32 s6, s{S_W}, 6")
        a("v_mov_b32 v1, s6")
        for i in range(stamp_n[0]):
            a(f"v_mov_b32 v2, s{64+2*i}")
            a(f"buffer_store_dword v2, v1, s[{SRD_X}:{SRD_X+3}], 0 offen offset:{4*i}")
        a(f"v_mov_b32 v2, s98")
        a(f"buffer_store_dword v2, v1, s[{SRD_X}:{SRD_X+3}], 0 offen offset:60")
    a.label("L_attn_done")
    a("s_endpgm")
    return a.text()

def gen_oproj():
    a = Asm()
    a.lines.append(".globl oproj_kernel\n.p2align 8\n.type oproj_kernel,@function\noproj_kernel:")
    SA, SB, SO = 8, 12, 16
    a("s_cmp_ge_u32 s2, 192")
    a("s_cbranch_scc1 L_oproj_done")
    a(f"s_load_dwordx16 s[{S_PTR}:{S_PTR+15}], s[0:1], 0")
    a("v_lshrrev_b32 v1, 6, v0")
    a("s_nop 0")
    a(f"v_readfirstlane_b32 s{S_W}, v1")
    a("v_and_b32 v0, 63, v0")
    a("s_and_b32 s6, s2, 7")
    a("s_lshr_b32 s7, s2, 3")
    a("s_mul_i32 s4, s7, 21846")
    a("s_lshr_b32 s4, s4, 16")
    a("s_mul_i32 s5, s4, 3")
    a("s_sub_u32 s5, s7, s5")
    a("s_waitcnt lgkmcnt(0)")
    a("s_lshl_b32 s28, s4, 20")
    a("s_lshl_b32 s29, s6, 10")
    a("s_add_u32 s28, s28, s29")
    a(f"s_add_u32 s{SA}, s{S_PTR+14}, s28")
    a(f"s_addc_u32 s{SA+1}, s{S_PTR+15}, 0")
    a(f"s_mov_b32 s{SA+2}, {127*8192+1024}")
    a(f"s_mov_b32 s{SA+3}, 0x00020000")
    a("s_mul_i32 s28, s6, 589824")
    a("s_mul_i32 s29, s5, 384")
    a("s_add_u32 s28, s28, s29")
    a(f"s_add_u32 s{SB}, s{S_PTR+8}, s28")
    a(f"s_addc_u32 s{SB+1}, s{S_PTR+9}, 0")
    a(f"s_mov_b32 s{SB+2}, {511*1152+384}")
    a(f"s_mov_b32 s{SB+3}, 0x00020000")
    a("s_mul_i32 s28, s6, 2359296")
    a("s_mul_i32 s29, s4, 294912")
    a("s_add_u32 s28, s28, s29")
    a("s_mul_i32 s29, s5, 768")
    a("s_add_u32 s28, s28, s29")
    a("s_add_u32 s28, s28, 0x1000000")
    a(f"s_add_u32 s{SO}, s{S_PTR+14}, s28")
    a(f"s_addc_u32 s{SO+1}, s{S_PTR+15}, 0")
    a(f"s_mov_b32 s{SO+2}, {127*2304+768}")
    a(f"s_mov_b32 s{SO+3}, 0x00020000")
    LB = 65536
    a("v_and_b32 v31, 31, v0")
    a("v_lshrrev_b32 v30, 5, v0")
    a("v_lshrrev_b32 v21, 3, v0")
    a("v_and_b32 v20, 7, v0")
    a("v_xor_b32 v20, v20, v21")
    a("v_lshlrev_b32 v20, 4, v20")
    a("v_lshl_add_u32 v10, v21, 13, v20")
    for i in range(3):
        a(f"v_add_u32 v19, {64*i}, v0")
        a("v_mul_u32_u24 v18, 2731, v19")
        a("v_lshrrev_b32 v18, 16, v18")
        a("v_mul_u32_u24 v17, 24, v18")
        a("v_sub_u32 v17, v19, v17")
        a("v_bfe_u32 v16, v18, 1, 1")
        a("v_lshlrev_b32 v16, 2, v16")
        a("v_xor_b32 v17, v17, v16")
        a("v_lshlrev_b32 v17, 4, v17")
        a("v_mul_u32_u24 v18, 1152, v18")
        a(f"v_add_u32 v{11+i}, v18, v17")
    a(f"s_lshl_b32 s29, s{S_W}, 12")
    a(f"s_lshl_b32 s30, s{S_W}, 18")
    a(f"s_mul_i32 s31, s{S_W}, 6144")
    a(f"s_mul_i32 s49, s{S_W}, {16*1152}")
    def issue(st):
        slot = st % 4
        for n in range(4):
            a(f"s_add_u32 s48, s29, {slot*16384 + n*1024}")
            a("s_mov_b32 m0, s48")
            a(f"s_add_u32 s48, s30, {n*8*8192 + st*128}")
            a(f"buffer_load_dwordx4 v10, s[{SA}:{SA+3}], s48 offen lds")
        for n in range(6):
            a(f"s_add_u32 s48, s31, {LB + slot*24576 + n*1024}")
            a("s_mov_b32 m0, s48")
            a(f"s_add_u32 s48, s49, {(st*64 + 8*(n//3))*1152}")
            a(f"buffer_load_dwordx4 v{11+n%3}, s[{SB}:{SB+3}], s48 offen lds")
    for st in range(3):
        issue(st)
    a(f"s_lshr_b32 s6, s{S_W}, 1")
    a(f"s_and_b32 s7, s{S_W}, 1")
    a("s_lshl_b32 s28, s6, 6")
    a("v_add_u32 v29, s28, v31")
    a("v_and_b32 v28, 7, v31")
    for kk in range(4):
        a(f"v_or_b32 v27, {2*kk}, v30")
        a("v_xor_b32 v27, v27, v28")
        a("v_lshlrev_b32 v27, 4, v27")
        a(f"v_lshl_add_u32 v{1+kk}, v29, 7, v27")
    a("v_bfe_u32 v27, v0, 2, 2")
    a("v_bfe_u32 v26, v0, 4, 1")
    a("v_and_b32 v25, 3, v0")
    a("v_lshrrev_b32 v24, 1, v25")
    a("v_lshl_add_u32 v24, v26, 1, v24")
    a("s_mul_i32 s28, s7, 12")
    a("v_add_u32 v24, s28, v24")
    a("v_lshrrev_b32 v23, 1, v27")
    a("v_lshlrev_b32 v23, 2, v23")
    a("v_lshl_add_u32 v22, v30, 3, v27")
    a("v_mul_u32_u24 v22, 384, v22")
    a("v_and_b32 v21, 1, v25")
    a("v_lshl_add_u32 v22, v21, 3, v22")
    a(f"v_add_u32 v22, {LB}, v22")
    for cb in range(3):
        a(f"v_add_u32 v21, {4*cb}, v24")
        a("v_xor_b32 v21, v21, v23")
        a(f"v_lshl_add_u32 v{5+cb}, v21, 4, v22")
        a(f"v_add_u32 v{14+cb}, 49152, v{5+cb}")
    ACC = 32
    FA, FB = 128, 144
    NST = 8
    for st in range(NST):
        slot = st % 4
        n = 20 if st <= NST-3 else (10 if st == NST-2 else 0)
        a(f"s_waitcnt vmcnt({n})")
        a("s_barrier")
        if st + 3 < NST:
            issue(st + 3)
        def reads(kk):
            bsel = kk & 1
            for rb in range(2):
                f = FA + bsel*8 + rb*4
                a(f"ds_read_b128 v[{f}:{f+3}], v{1+kk} offset:{slot*16384 + rb*4096}")
            for cb in range(3):
                f = FB + bsel*12 + cb*4
                off = (slot & 1)*24576 + kk*16*384
                ar = (5 if slot < 2 else 14) + cb
                a(f"ds_read_b64_tr_b16 v[{f}:{f+1}], v{ar} offset:{off}")
                a(f"ds_read_b64_tr_b16 v[{f+2}:{f+3}], v{ar} offset:{off+4*384}")
        reads(0)
        for kk in range(4):
            if kk + 1 < 4:
                reads(kk + 1)
                a("s_waitcnt lgkmcnt(8)")
            else:
                a("s_waitcnt lgkmcnt(0)")
            bsel = kk & 1
            for rb in range(2):
                for cb in range(3):
                    acc = ACC + 16*(rb*3+cb)
                    cin = "0" if (st == 0 and kk == 0) else f"v[{acc}:{acc+15}]"
                    fa = FA + bsel*8 + rb*4; fb = FB + bsel*12 + cb*4
                    a(f"v_mfma_f32_32x32x16_bf16 v[{acc}:{acc+15}], v[{fb}:{fb+3}], v[{fa}:{fa+3}], {cin}")
    a("s_nop 15")
    a("s_movk_i32 s28, 2304")
    a("v_mul_lo_u32 v29, v29, s28")
    a("v_lshl_add_u32 v29, v30, 4, v29")
    a("s_mul_i32 s28, s7, 384")
    a("v_add_u32 v29, s28, v29")
    for rb in range(2):
        for cb in range(3):
            for i4 in range(4):
                r = ACC + 16*(rb*3+cb) + 4*i4
                a(f"buffer_store_dwordx4 v[{r}:{r+3}], v29, s[{SO}:{SO+3}], 0 offen offset:{cb*128+i4*32}" if rb == 0 else
                  f"buffer_store_dwordx4 v[{r}:{r+3}], v28, s[{SO}:{SO+3}], 0 offen offset:{cb*128+i4*32}")
        if rb == 0:
            a(f"v_add_u32 v28, {32*2304}, v29")
    a.label("L_oproj_done")
    a("s_endpgm")
    return a.text()

def gen_reduce():
    a = Asm()
    a.lines.append(".globl reduce_kernel\n.p2align 8\n.type reduce_kernel,@function\nreduce_kernel:")
    a("s_cmp_ge_u32 s2, 576")
    a("s_cbranch_scc1 L_red_done")
    a(f"s_load_dwordx4 s[{S_PTR}:{S_PTR+3}], s[0:1], 40")
    a(f"s_load_dwordx2 s[{S_PTR+4}:{S_PTR+5}], s[0:1], 56")
    a("s_lshl_b32 s4, s2, 12")
    a("v_lshl_add_u32 v1, v0, 4, s4")
    a("s_waitcnt lgkmcnt(0)")
    a(f"s_add_u32 s8, s{S_PTR+4}, 0x1000000")
    a(f"s_addc_u32 s9, s{S_PTR+5}, 0")
    a(f"s_mov_b32 s10, {8*2359296}")
    a("s_mov_b32 s11, 0x00020000")
    a(f"s_mov_b32 s12, s{S_PTR}")
    a(f"s_mov_b32 s13, s{S_PTR+1}")
    a("s_mov_b32 s14, 1179648")
    a("s_mov_b32 s15, 0x00020000")
    for k in range(8):
        a(f"s_mov_b32 s16, {k*2359296}")
        a(f"buffer_load_dwordx4 v[{4+4*k}:{7+4*k}], v1, s[8:11], s16 offen")
    for k in range(1, 8):
        a(f"s_waitcnt vmcnt({7-k})")
        for e in range(4):
            a(f"v_add_f32 v{4+e}, v{4+e}, v{4+4*k+e}")
    a("v_cvt_pk_bf16_f32 v2, v4, v5")
    a("v_cvt_pk_bf16_f32 v3, v6, v7")
    a("v_lshrrev_b32 v1, 1, v1")
    a("buffer_store_dwordx2 v[2:3], v1, s[12:15], 0 offen")
    a.label("L_red_done")
    a("s_endpgm")
    return a.text()

HEADER = open('header.txt').read()

def main():
    out = HEADER + gen_attn() + gen_oproj() + gen_reduce()
    out += f""".section .rodata,"a"
.p2align 6
.amdhsa_kernel attn_kernel
  .amdhsa_next_free_vgpr {ACC_OFF+NAGPR}
  .amdhsa_next_free_sgpr 100
  .amdhsa_accum_offset {ACC_OFF}
  .amdhsa_group_segment_fixed_size 0
  .amdhsa_kernarg_size 64
  .amdhsa_user_sgpr_count 2
  .amdhsa_user_sgpr_kernarg_segment_ptr 1
  .amdhsa_system_sgpr_workgroup_id_x 1
.end_amdhsa_kernel
.p2align 6
.amdhsa_kernel oproj_kernel
  .amdhsa_next_free_vgpr 168
  .amdhsa_next_free_sgpr 64
  .amdhsa_accum_offset 168
  .amdhsa_group_segment_fixed_size 0
  .amdhsa_kernarg_size 64
  .amdhsa_user_sgpr_count 2
  .amdhsa_user_sgpr_kernarg_segment_ptr 1
  .amdhsa_system_sgpr_workgroup_id_x 1
.end_amdhsa_kernel
.p2align 6
.amdhsa_kernel reduce_kernel
  .amdhsa_next_free_vgpr 40
  .amdhsa_next_free_sgpr 64
  .amdhsa_accum_offset 40
  .amdhsa_group_segment_fixed_size 0
  .amdhsa_kernarg_size 64
  .amdhsa_user_sgpr_count 2
  .amdhsa_user_sgpr_kernarg_segment_ptr 1
  .amdhsa_system_sgpr_workgroup_id_x 1
.end_amdhsa_kernel
"""
    path = sys.argv[1] if len(sys.argv) > 1 else "standalone__mha_block_cached__near_ridge.s"
    open(path, "w").write(out)

main()
```

```python
import sys, os, math, struct
EXP = os.environ.get('EXP', '')
KVPOL = os.environ.get('KVPOL', 'nt')
PROF = os.environ.get('PROF', '')
APOL = os.environ.get('APOL', '')

class Asm:
    def __init__(self):
        self.lines = []
        self.lbl = 0
    def __call__(self, s):
        self.lines.append("    " + s)
    def label(self, name):
        self.lines.append(name + ":")
    def newlabel(self, base):
        self.lbl += 1
        return f"L_{base}_{self.lbl}"
    def comment(self, s):
        self.lines.append("    ; " + s)
    def text(self):
        return "\n".join(self.lines) + "\n"

def f32bits(x):
    return struct.unpack("<I", struct.pack("<f", x))[0]

LDS_K = 0
LDS_V = 65536
LDS_STG = 131072
S_W = 3
SRD_X, SRD_WQ, SRD_K, SRD_V, SRD_O = 8, 12, 16, 20, 24
S_KOFF, S_VOFF = 28, 29
S_TMP0, S_TMP1, S_TMP2 = 30, 31, 48
S_C, S_NC, S_ROT = 49, 50, 51
S_PTR = 32
V_KR = 1; V_VR = 9; V_KD = 13; V_VD = 17
V_MOLD, V_MNEW, V_L, V_ALPHA, V_T0, V_T1, V_NMC = 18, 19, 20, 21, 22, 23, 24
V_WR = 25; V_XOFF = 29; V_WD = 30; V_T2 = 31
V_O = 32
V_S = [96, 128]
V_P = 160
ACC_OFF = 176
A_Q = 0; A_VF = 32; A_KF = 96
NAGPR = 160
C_SM = (128 ** -0.5) * math.log2(math.e)

def gen_attn():
    a = Asm()
    a.lines.append(".globl attn_kernel\n.p2align 8\n.type attn_kernel,@function\nattn_kernel:")
    a("s_cmp_ge_u32 s2, 256")
    a("s_cbranch_scc1 L_attn_done")
    a(f"s_load_dwordx16 s[{S_PTR}:{S_PTR+15}], s[0:1], 0")
    a("v_lshrrev_b32 v1, 6, v0")
    a("s_nop 0")
    a(f"v_readfirstlane_b32 s{S_W}, v1")
    a("v_and_b32 v0, 63, v0")
    stamp_n = [0]
    def stamp():
        if PROF:
            a(f"s_memtime s[{64+2*stamp_n[0]}:{65+2*stamp_n[0]}]")
            stamp_n[0] += 1
    if PROF:
        a("s_memrealtime s[98:99]")
    stamp()
    MAP = os.environ.get('MAP', '2')
    if MAP == '0':
        a("s_lshr_b32 s4, s2, 5")
        a("s_and_b32 s5, s2, 31")
    else:
        a("s_and_b32 s4, s2, 6")
        a("s_lshr_b32 s5, s2, 7")
        a("s_or_b32 s4, s4, s5")
        a("s_and_b32 s5, s2, 1")
        a("s_lshl_b32 s5, s5, 4")
        a("s_bfe_u32 s6, s2, 0x40003")
        a("s_or_b32 s5, s5, s6")
    a("s_lshl_b32 s6, s4, 5")
    a("s_or_b32 s53, s6, s5")
    a("s_waitcnt lgkmcnt(0)")
    if PROF == 'S': stamp()
    a("s_mul_i32 s6, s4, 147456")
    a(f"s_add_u32 s{SRD_X}, s{S_PTR}, s6")
    a(f"s_addc_u32 s{SRD_X+1}, s{S_PTR+1}, 0")
    a(f"s_mov_b32 s{SRD_X+2}, 147456")
    a(f"s_mov_b32 s{SRD_X+3}, 0x00020000")
    a("s_lshl_b32 s6, s5, 8")
    a(f"s_add_u32 s{SRD_WQ}, s{S_PTR+6}, s6")
    a(f"s_addc_u32 s{SRD_WQ+1}, s{S_PTR+7}, 0")
    a(f"s_mov_b32 s{SRD_WQ+2}, {575*8192+256}")
    a(f"s_mov_b32 s{SRD_WQ+3}, 0x00020000")
    a("s_lshl_b32 s6, s53, 18")
    a(f"s_add_u32 s{SRD_K}, s{S_PTR+2}, s6")
    a(f"s_addc_u32 s{SRD_K+1}, s{S_PTR+3}, 0")
    a(f"s_mov_b32 s{SRD_K+2}, 262144")
    a(f"s_mov_b32 s{SRD_K+3}, 0x00020000")
    a(f"s_add_u32 s{SRD_V}, s{S_PTR+4}, s6")
    a(f"s_addc_u32 s{SRD_V+1}, s{S_PTR+5}, 0")
    a(f"s_mov_b32 s{SRD_V+2}, 262144")
    a(f"s_mov_b32 s{SRD_V+3}, 0x00020000")
    a("s_lshl_b32 s6, s4, 20")
    a("s_lshr_b32 s7, s5, 2")
    a("s_lshl_b32 s7, s7, 17")
    a("s_add_u32 s6, s6, s7")
    a("s_and_b32 s7, s5, 3")
    a("s_lshl_b32 s7, s7, 8")
    a("s_add_u32 s6, s6, s7")
    a(f"s_add_u32 s{SRD_O}, s{S_PTR+14}, s6")
    a(f"s_addc_u32 s{SRD_O+1}, s{S_PTR+15}, 0")
    a(f"s_mov_b32 s{SRD_O+2}, {127*1024+256}")
    a(f"s_mov_b32 s{SRD_O+3}, 0x00020000")
    a(f"s_and_b32 s{S_ROT}, s2, 15")
    a(f"s_lshl_b32 s{S_ROT}, s{S_ROT}, 14")
    a(f"s_mov_b32 s{S_C}, 0x{f32bits(C_SM):08x}")
    a(f"s_mov_b32 s{S_NC}, 0x{f32bits(-C_SM):08x}")
    a(f"s_mov_b32 s56, 0x{f32bits(C_SM):08x}")
    a(f"s_mov_b32 s57, 0x{f32bits(C_SM):08x}")
    L31, HH = 96, 97
    V_XD = V_XOFF
    V_XR = 164
    V_XA, V_WA = 168, 172
    a(f"v_and_b32 v{L31}, 31, v0")
    a(f"v_lshrrev_b32 v{HH}, 5, v0")
    a("v_lshrrev_b32 v99, 4, v0")
    a("v_and_b32 v100, 15, v0")
    a("v_lshlrev_b32 v101, 2, v99")
    a("v_xor_b32 v101, v101, v100")
    a("v_lshlrev_b32 v101, 4, v101")
    a(f"v_lshl_add_u32 v{V_VD}, v99, 8, v101")
    a(f"v_lshl_add_u32 v{V_WD}, v99, 13, v101")
    for i in range(4):
        a(f"v_add_u32 v102, {4*i}, v99")
        a("v_xor_b32 v102, v102, v100")
        a("v_lshlrev_b32 v102, 4, v102")
        a(f"v_lshl_add_u32 v{V_KD+i}, v99, 8, v102")
    a("v_lshrrev_b32 v102, 3, v0")
    a("v_and_b32 v103, 7, v0")
    a("v_xor_b32 v103, v103, v102")
    a("v_lshlrev_b32 v103, 4, v103")
    a("s_movk_i32 s7, 1152")
    a("v_mul_lo_u32 v102, v102, s7")
    a(f"v_add_u32 v{V_XD}, v102, v103")
    S_H8 = 52
    a(f"s_and_b32 s{S_H8}, s{S_W}, 1")
    a(f"s_lshl_b32 s{S_H8}, s{S_H8}, 13")
    S_XG, S_WG = 54, 55
    a(f"s_and_b32 s{S_XG}, s{S_W}, 1")
    a(f"s_mul_i32 s{S_WG}, s{S_XG}, {32*8192}")
    a(f"s_mul_i32 s{S_XG}, s{S_XG}, {64*1152}")

    def kv_issue(which, tile):
        base = (LDS_K if which == 'K' else LDS_V) + (tile % 4) * 16384
        for g in range(2):
            a(f"s_add_u32 s{S_TMP2}, s{S_H8}, {base + g*4096}")
            a(f"s_mov_b32 m0, s{S_TMP2}")
            a(f"s_add_u32 s{S_TMP2}, s{S_ROT}, {tile*16384}")
            a(f"s_and_b32 s{S_TMP2}, s{S_TMP2}, 0x3ffff")
            a(f"s_add_u32 s{S_TMP2}, s{S_TMP2}, s{S_H8}")
            if g: a(f"s_add_u32 s{S_TMP2}, s{S_TMP2}, 4096")
            for n in range(4):
                if which == 'K':
                    a(f"buffer_load_dwordx4 v{V_KD+n}, s[{SRD_K}:{SRD_K+3}], s{S_TMP2} offen offset:{n*1024} {KVPOL} lds")
                else:
                    a(f"buffer_load_dwordx4 v{V_VD}, s[{SRD_V}:{SRD_V+3}], s{S_TMP2} offen offset:{n*1024} {KVPOL} lds")
    ABUF = [(49152, 81920), (98304, 114688), (131072, 147456)]
    def a_issue(st):
        xreg, wreg = ABUF[st % 3]
        for n in range(8):
            a(f"s_add_u32 s{S_TMP2}, s{S_H8}, {xreg + n*1024}")
            a(f"s_mov_b32 m0, s{S_TMP2}")
            a(f"s_add_u32 s{S_TMP2}, s{S_XG}, {8*n*1152 + st*128}")
            a(f"buffer_load_dwordx4 v{V_XD}, s[{SRD_X}:{SRD_X+3}], s{S_TMP2} offen {APOL} lds")
        for n in range(8):
            a(f"s_add_u32 s{S_TMP2}, s{S_H8}, {wreg + n*1024}")
            a(f"s_mov_b32 m0, s{S_TMP2}")
            a(f"s_add_u32 s{S_TMP2}, s{S_WG}, {(st*64 + 4*n)*8192}")
            a(f"buffer_load_dwordx4 v{V_WD}, s[{SRD_WQ}:{SRD_WQ+3}], s{S_TMP2} offen {APOL} lds")
    def role(is_kv, fn):
        lb = a.newlabel("role")
        a(f"s_cmp_lt_u32 s{S_W}, 2")
        a(f"s_cbranch_scc{1 if is_kv else 0} {lb}")
        fn()
        a.label(lb)
    role(False, lambda: [a_issue(st) for st in range(3)])
    if PROF == 'S': stamp()
    a(f"v_and_b32 v102, 15, v{L31}")
    for ks in range(8):
        a(f"v_or_b32 v103, {2*ks}, v{HH}")
        a("v_xor_b32 v103, v103, v102")
        a("v_lshlrev_b32 v103, 4, v103")
        a(f"v_lshl_add_u32 v{V_KR+ks}, v{L31}, 8, v103")
    a(f"s_lshl_b32 s6, s{S_W}, 5")
    a(f"v_add_u32 v102, s6, v{L31}")
    a(f"v_and_b32 v104, 7, v{L31}")
    for tp in range(4):
        a(f"v_or_b32 v103, {2*tp}, v{HH}")
        a("v_xor_b32 v103, v103, v104")
        a("v_lshlrev_b32 v103, 4, v103")
        a(f"v_lshl_add_u32 v{V_XR+tp}, v102, 7, v103")
    a("v_bfe_u32 v103, v0, 2, 2")
    a("v_bfe_u32 v104, v0, 4, 1")
    a("v_and_b32 v105, 3, v0")
    a("v_lshlrev_b32 v106, 5, v104")
    a("v_lshrrev_b32 v107, 1, v105")
    a("v_lshl_add_u32 v106, v107, 4, v106")
    a("v_and_b32 v107, 1, v105")
    a("v_lshl_add_u32 v106, v107, 3, v106")
    a(f"v_lshl_add_u32 v107, v{HH}, 2, v103")
    a("v_lshl_add_u32 v108, v107, 8, v106")
    a(f"v_add_u32 v108, {LDS_V}, v108")
    for db in range(4):
        a(f"v_xor_b32 v109, {db}, v103")
        a(f"v_lshl_add_u32 v{V_VR+db}, v109, 6, v108")
    a(f"v_lshl_add_u32 v107, v{HH}, 3, v103")
    a("v_lshl_add_u32 v108, v107, 8, v106")
    for db in range(4):
        a(f"v_xor_b32 v109, {db}, v103")
        a(f"v_lshl_add_u32 v{V_WR+db}, v109, 6, v108")

    def emit_stream(mops, valu_segments, ahead=5):
        vq = []
        for (mi, lst) in valu_segments:
            for v in lst:
                vq.append((mi, v))
        nm = len(mops)
        per = max(1, -(-len(vq) // max(nm, 1)))
        issued = 0
        need_seq = []
        rd_ptr = 0
        def issue_reads(upto):
            nonlocal rd_ptr, issued
            while rd_ptr <= upto and rd_ptr < nm:
                for r in mops[rd_ptr][0]:
                    a(r); issued += 1
                need_seq.append(issued)
                rd_ptr += 1
        issue_reads(ahead - 1)
        vi = 0
        for i in range(nm):
            issue_reads(i + ahead)
            later = issued - need_seq[i]
            a(f"s_waitcnt lgkmcnt({min(later,15)})")
            a(mops[i][1])
            cnt = 0
            while vi < len(vq) and cnt < per and vq[vi][0] <= i:
                a(vq[vi][1]); vi += 1; cnt += 1
        while vi < len(vq):
            a(vq[vi][1]); vi += 1

    WF = V_S[0]
    XF = A_KF
    for st in range(9):
        xreg, wreg = ABUF[st % 3]
        for i in range(4):
            a(f"v_add_u32 v{V_XA+i}, {xreg}, v{V_XR+i}")
            a(f"v_add_u32 v{V_WA+i}, {wreg}, v{V_WR+i}")
        role(False, lambda: a(f"s_waitcnt vmcnt({16 if st < 8 else 0})"))
        if PROF == 'A' or (PROF == 'S' and st in (0,1,8)): stamp()
        a("s_barrier")
        if st == 0:
            role(True, lambda: [kv_issue(*t) for t in (('K',0),('K',1),('K',2),('V',0))])
        if st >= 1 and st + 2 <= 8:
            role(False, lambda: a_issue(st + 2))
        if st == 7:
            role(True, lambda: [kv_issue('K', 3), kv_issue('V', 1)])
        mops = []
        for tp in range(4):
            for db in range(4):
                f = WF + (tp*4+db)*4
                rd = []
                if db == 0:
                    rd.append(f"ds_read_b128 a[{XF+4*tp}:{XF+4*tp+3}], v{V_XA+tp}")
                rd.append(f"ds_read_b64_tr_b16 v[{f}:{f+1}], v{V_WA+db} offset:{tp*4096}")
                rd.append(f"ds_read_b64_tr_b16 v[{f+2}:{f+3}], v{V_WA+db} offset:{tp*4096+1024}")
                acc = V_O + 16*db
                cin = "0" if (st == 0 and tp == 0) else f"v[{acc}:{acc+15}]"
                mops.append((rd, f"v_mfma_f32_32x32x16_bf16 v[{acc}:{acc+15}], v[{f}:{f+3}], a[{XF+4*tp}:{XF+4*tp+3}], {cin}"))
        emit_stream(mops, [], ahead=5)
    stamp()
    a("s_barrier")
    a(f"s_lshl_b32 s{S_TMP0}, s{S_W}, 13")
    a(f"v_and_b32 v{L31}, 31, v0")
    a(f"v_lshrrev_b32 v{HH}, 5, v0")
    a(f"v_and_b32 v{V_T0}, 15, v{L31}")
    a(f"v_lshlrev_b32 v{V_T1}, 8, v{L31}")
    a(f"v_lshl_add_u32 v{V_T1}, v{HH}, 3, v{V_T1}")
    a(f"v_add_u32 v{V_T1}, s{S_TMP0}, v{V_T1}")
    a(f"v_add_u32 v{V_T1}, {LDS_STG}, v{V_T1}")
    a("s_nop 7")
    for db in range(4):
        for i4 in range(4):
            r = V_O + 16*db + 4*i4
            pk = V_P + 2*((db*4+i4) % 8)
            a(f"v_cvt_pk_bf16_f32 v{pk}, v{r}, v{r+1}")
            a(f"v_cvt_pk_bf16_f32 v{pk+1}, v{r+2}, v{r+3}")
            a(f"v_xor_b32 v{V_T2}, {4*db+i4}, v{V_T0}")
            a(f"v_lshl_add_u32 v{V_T2}, v{V_T2}, 4, v{V_T1}")
            a(f"ds_write_b64 v{V_T2}, v[{pk}:{pk+1}]")
    a("s_waitcnt lgkmcnt(0)")
    a(f"v_lshlrev_b32 v{V_T1}, 8, v{L31}")
    a(f"v_add_u32 v{V_T1}, s{S_TMP0}, v{V_T1}")
    a(f"v_add_u32 v{V_T1}, {LDS_STG}, v{V_T1}")
    for ks in range(8):
        a(f"v_or_b32 v{V_T2}, {2*ks}, v{HH}")
        a(f"v_xor_b32 v{V_T2}, v{V_T2}, v{V_T0}")
        a(f"v_lshl_add_u32 v{V_T2}, v{V_T2}, 4, v{V_T1}")
        a(f"ds_read_b128 a[{A_Q+4*ks}:{A_Q+4*ks+3}], v{V_T2}")
    a(f"v_mov_b32 v{V_MOLD}, 0xff800000")
    a(f"v_mov_b32 v{V_L}, 0")
    for i in range(64):
        a(f"v_mov_b32 v{V_O+i}, 0")
    a("s_waitcnt lgkmcnt(0)")

    def qk_ops(j, sreg):
        ops = []
        slot = j % 4
        for kb in range(2):
            for ks in range(8):
                f = A_KF + ((kb*8+ks) % 16)*4
                rd = [f"ds_read_b128 a[{f}:{f+3}], v{V_KR+ks} offset:{LDS_K + slot*16384 + kb*8192}"]
                acc = sreg + 16*kb
                cin = "0" if ks == 0 else f"v[{acc}:{acc+15}]"
                mf = f"v_mfma_f32_32x32x16_bf16 v[{acc}:{acc+15}], a[{f}:{f+3}], a[{A_Q+4*ks}:{A_Q+4*ks+3}], {cin}"
                ops.append((rd, mf))
        return ops
    def pv_ops(j):
        ops = []
        slot = j % 4
        for kk in range(4):
            for db in range(4):
                f = A_VF + ((kk*4+db) % 16)*4
                off = slot*16384 + kk*4096
                rd = [f"ds_read_b64_tr_b16 a[{f}:{f+1}], v{V_VR+db} offset:{off}",
                      f"ds_read_b64_tr_b16 a[{f+2}:{f+3}], v{V_VR+db} offset:{off+2048}"]
                acc = V_O + 16*db
                mf = f"v_mfma_f32_32x32x16_bf16 v[{acc}:{acc+15}], a[{f}:{f+3}], v[{V_P+4*kk}:{V_P+4*kk+3}], v[{acc}:{acc+15}]"
                ops.append((rd, mf))
        return ops
    def softmax_ops(S):
        p1 = []
        p1.append(f"v_max3_f32 v{V_T0}, v{S}, v{S+1}, v{S+2}")
        p1.append(f"v_max3_f32 v{V_T1}, v{S+3}, v{S+4}, v{S+5}")
        for i in range(6, 30, 4):
            p1.append(f"v_max3_f32 v{V_T0}, v{V_T0}, v{S+i}, v{S+i+1}")
            p1.append(f"v_max3_f32 v{V_T1}, v{V_T1}, v{S+i+2}, v{S+i+3}")
        p1.append(f"v_max3_f32 v{V_T0}, v{V_T0}, v{S+30}, v{S+31}")
        p1.append(f"v_max_f32 v{V_T0}, v{V_T0}, v{V_T1}")
        p1.append(f"v_mov_b32 v{V_T1}, v{V_T0}")
        p1.append("s_nop 1")
        p1.append(f"v_permlane32_swap_b32 v{V_T0}, v{V_T1}")
        p1.append("s_nop 1")
        p1.append(f"v_max3_f32 v{V_MNEW}, v{V_MOLD}, v{V_T0}, v{V_T1}")
        p1.append(f"v_sub_f32 v{V_T0}, v{V_MOLD}, v{V_MNEW}")
        p1.append(f"v_mul_f32 v{V_NMC}, s{S_NC}, v{V_MNEW}")
        p1.append(f"v_mul_f32 v{V_T0}, s{S_C}, v{V_T0}")
        p1.append(f"v_mov_b32 v{V_MOLD}, v{V_MNEW}")
        p1.append(f"v_exp_f32 v{V_ALPHA}, v{V_T0}")
        for i in range(32):
            p1.append(f"v_fma_f32 v{S+i}, v{S+i}, s{S_C}, v{V_NMC}")
            if i >= 1:
                p1.append(f"v_exp_f32 v{S+i-1}, v{S+i-1}")
        p1.append(f"v_exp_f32 v{S+31}, v{S+31}")
        p1.append(f"v_mul_f32 v{V_L}, v{V_L}, v{V_ALPHA}")
        p1.append(f"v_add_f32 v{V_T0}, v{S}, v{S+1}")
        p1.append(f"v_add_f32 v{V_T1}, v{S+2}, v{S+3}")
        for i in range(4, 32, 2):
            p1.append(f"v_add_f32 v{V_T0}, v{V_T0}, v{S+i}")
            p1.append(f"v_add_f32 v{V_T1}, v{V_T1}, v{S+i+1}")
        p1.append(f"v_add_f32 v{V_T0}, v{V_T0}, v{V_T1}")
        p1.append(f"v_add_f32 v{V_L}, v{V_L}, v{V_T0}")
        cv = [f"v_cvt_pk_bf16_f32 v{V_P+i}, v{S+2*i}, v{S+2*i+1}" for i in range(16)]
        rs = [f"v_mul_f32 v{V_O+i}, v{V_O+i}, v{V_ALPHA}" for i in range(64)]
        return p1, cv, rs

    a("s_waitcnt vmcnt(40)")
    a("s_barrier")
    emit_stream(qk_ops(0, V_S[0]), [])
    a("s_nop 7")
    issue_cnt = lambda i: (8 if i + 4 <= 15 else 0) + (8 if i + 2 <= 15 else 0)
    for j in range(16):
        a.comment(f"==== iteration {j}")
        if j % 2 == 0 and PROF == '1': stamp()
        if j == 0: n = 32
        elif j == 1: n = 16 + issue_cnt(0)
        else: n = issue_cnt(j-2) + issue_cnt(j-1)
        a(f"s_waitcnt vmcnt({n})")
        a("s_barrier")
        def iss():
            if j + 4 <= 15: kv_issue('K', j + 4)
            if j + 2 <= 15: kv_issue('V', j + 2)
        if j + 2 <= 15: role(True, iss)
        if 'nocompute' in EXP:
            continue
        Scur = V_S[j % 2]; Snxt = V_S[(j+1) % 2]
        p1, cv, rs = softmax_ops(Scur)
        pv = pv_ops(j - 1) if j >= 1 else []
        qk = qk_ops(j + 1, Snxt) if j + 1 <= 15 else []
        npv = len(pv)
        segs = [(0, p1), (max(npv-1, 0), cv), (min(npv + 1, npv + len(qk)), rs)]
        emit_stream(pv + qk, segs)
    a("s_waitcnt vmcnt(0)")
    a("s_barrier")
    if 'nocompute' not in EXP:
        emit_stream(pv_ops(15), [])
    stamp()
    a("s_nop 15")
    a(f"v_mov_b32 v{V_T1}, v{V_L}")
    a("s_nop 1")
    a(f"v_permlane32_swap_b32 v{V_L}, v{V_T1}")
    a("s_nop 1")
    a(f"v_add_f32 v{V_L}, v{V_L}, v{V_T1}")
    a(f"v_rcp_f32 v{V_L}, v{V_L}")
    a(f"s_lshl_b32 s{S_TMP0}, s{S_W}, 13")
    a(f"v_and_b32 v{V_T2}, 31, v0")
    a(f"v_and_b32 v{V_T0}, 15, v{V_T2}")
    a(f"v_lshlrev_b32 v{V_T2}, 8, v{V_T2}")
    a(f"v_lshrrev_b32 v{V_MNEW}, 5, v0")
    a(f"v_lshl_add_u32 v{V_T2}, v{V_MNEW}, 3, v{V_T2}")
    a(f"v_add_u32 v{V_T2}, s{S_TMP0}, v{V_T2}")
    for db in range(4):
        for i4 in range(4):
            r = V_O + 16*db + 4*i4
            pk = V_S[0] + 2*(db*4+i4)
            for e in range(4):
                a(f"v_mul_f32 v{r+e}, v{r+e}, v{V_L}")
            a(f"v_cvt_pk_bf16_f32 v{pk}, v{r}, v{r+1}")
            a(f"v_cvt_pk_bf16_f32 v{pk+1}, v{r+2}, v{r+3}")
            a(f"v_xor_b32 v{V_MOLD}, {4*db+i4}, v{V_T0}")
            a(f"v_lshl_add_u32 v{V_MOLD}, v{V_MOLD}, 4, v{V_T2}")
            a(f"ds_write_b64 v{V_MOLD}, v[{pk}:{pk+1}]")
    a(f"v_lshrrev_b32 v{V_MNEW}, 4, v0")
    a(f"v_and_b32 v{V_T0}, 15, v0")
    a(f"s_lshl_b32 s{S_TMP1}, s{S_W}, 15")
    a("s_waitcnt lgkmcnt(0)")
    for n in range(8):
        a(f"v_add_u32 v{V_MOLD}, {4*n}, v{V_MNEW}")
        a(f"v_xor_b32 v{V_ALPHA}, v{V_MOLD}, v{V_T0}")
        a(f"v_and_b32 v{V_ALPHA}, 15, v{V_ALPHA}")
        a(f"v_lshlrev_b32 v{V_ALPHA}, 4, v{V_ALPHA}")
        a(f"v_lshl_add_u32 v{V_ALPHA}, v{V_MOLD}, 8, v{V_ALPHA}")
        a(f"v_add_u32 v{V_ALPHA}, s{S_TMP0}, v{V_ALPHA}")
        a(f"ds_read_b128 v[{V_O+4*n}:{V_O+4*n+3}], v{V_ALPHA}")
    a(f"v_lshlrev_b32 v{V_T0}, 4, v{V_T0}")
    a(f"v_lshl_add_u32 v{V_T0}, v{V_MNEW}, 10, v{V_T0}")
    for n in range(8):
        a(f"s_waitcnt lgkmcnt({7-n})")
        a(f"s_add_u32 s{S_TMP2}, s{S_TMP1}, {4*n*1024}")
        a(f"buffer_store_dwordx4 v[{V_O+4*n}:{V_O+4*n+3}], v{V_T0}, s[{SRD_O}:{SRD_O+3}], s{S_TMP2} offen")
    if PROF:
        stamp()
        a("s_waitcnt vmcnt(0) lgkmcnt(0)")
        a(f"s_lshl_b32 s6, s2, 8")
        a(f"s_add_u32 s6, s6, 0x1000000")
        a(f"s_add_u32 s{SRD_X}, s{S_PTR+14}, s6")
        a(f"s_addc_u32 s{SRD_X+1}, s{S_PTR+15}, 0")
        a(f"s_mov_b32 s{SRD_X+2}, 256")
        a(f"s_lshl_b32 s6, s{S_W}, 6")
        a("v_mov_b32 v1, s6")
        for i in range(stamp_n[0]):
            a(f"v_mov_b32 v2, s{64+2*i}")
            a(f"buffer_store_dword v2, v1, s[{SRD_X}:{SRD_X+3}], 0 offen offset:{4*i}")
        a(f"v_mov_b32 v2, s98")
        a(f"buffer_store_dword v2, v1, s[{SRD_X}:{SRD_X+3}], 0 offen offset:60")
    a.label("L_attn_done")
    a("s_endpgm")
    return a.text()

def gen_oproj():
    a = Asm()
    a.lines.append(".globl oproj_kernel\n.p2align 8\n.type oproj_kernel,@function\noproj_kernel:")
    SA, SB, SO = 8, 12, 16
    a("s_cmp_ge_u32 s2, 192")
    a("s_cbranch_scc1 L_oproj_done")
    sn = [0]
    def stamp():
        if PROF == 'O':
            a(f"s_memtime s[{64+2*sn[0]}:{65+2*sn[0]}]"); sn[0] += 1
    stamp()
    a(f"s_load_dwordx16 s[{S_PTR}:{S_PTR+15}], s[0:1], 0")
    a("v_lshrrev_b32 v1, 6, v0")
    a("s_nop 0")
    a(f"v_readfirstlane_b32 s{S_W}, v1")
    a("v_and_b32 v0, 63, v0")
    a("s_and_b32 s6, s2, 7")
    a("s_lshr_b32 s7, s2, 3")
    a("s_mul_i32 s4, s7, 21846")
    a("s_lshr_b32 s4, s4, 16")
    a("s_mul_i32 s5, s4, 3")
    a("s_sub_u32 s5, s7, s5")
    a("s_waitcnt lgkmcnt(0)")
    a("s_lshl_b32 s28, s4, 20")
    a("s_lshl_b32 s29, s6, 17")
    a("s_add_u32 s28, s28, s29")
    a(f"s_add_u32 s{SA}, s{S_PTR+14}, s28")
    a(f"s_addc_u32 s{SA+1}, s{S_PTR+15}, 0")
    a(f"s_mov_b32 s{SA+2}, 131072")
    a(f"s_mov_b32 s{SA+3}, 0x00020000")
    a("s_mul_i32 s28, s6, 589824")
    a("s_mul_i32 s29, s5, 384")
    a("s_add_u32 s28, s28, s29")
    a(f"s_add_u32 s{SB}, s{S_PTR+8}, s28")
    a(f"s_addc_u32 s{SB+1}, s{S_PTR+9}, 0")
    a(f"s_mov_b32 s{SB+2}, {511*1152+384}")
    a(f"s_mov_b32 s{SB+3}, 0x00020000")
    a("s_mul_i32 s28, s6, 2359296")
    a("s_mul_i32 s29, s4, 294912")
    a("s_add_u32 s28, s28, s29")
    a("s_mul_i32 s29, s5, 768")
    a("s_add_u32 s28, s28, s29")
    a("s_add_u32 s28, s28, 0x1000000")
    a(f"s_add_u32 s{SO}, s{S_PTR+14}, s28")
    a(f"s_addc_u32 s{SO+1}, s{S_PTR+15}, 0")
    a(f"s_mov_b32 s{SO+2}, {127*2304+768}")
    a(f"s_mov_b32 s{SO+3}, 0x00020000")
    LB = 65536
    a("v_and_b32 v31, 31, v0")
    a("v_lshrrev_b32 v30, 5, v0")
    a("v_lshrrev_b32 v21, 3, v0")
    a("v_and_b32 v20, 7, v0")
    a("v_xor_b32 v20, v20, v21")
    a("v_lshlrev_b32 v20, 4, v20")
    a("v_lshl_add_u32 v10, v21, 10, v20")
    for i in range(3):
        a(f"v_add_u32 v19, {64*i}, v0")
        a("v_mul_u32_u24 v18, 2731, v19")
        a("v_lshrrev_b32 v18, 16, v18")
        a("v_mul_u32_u24 v17, 24, v18")
        a("v_sub_u32 v17, v19, v17")
        a("v_bfe_u32 v16, v18, 1, 1")
        a("v_lshlrev_b32 v16, 2, v16")
        a("v_xor_b32 v17, v17, v16")
        a("v_lshlrev_b32 v17, 4, v17")
        a("v_mul_u32_u24 v18, 1152, v18")
        a(f"v_add_u32 v{11+i}, v18, v17")
    a(f"s_lshl_b32 s29, s{S_W}, 12")
    a(f"s_lshl_b32 s30, s{S_W}, 15")
    a(f"s_mul_i32 s31, s{S_W}, 6144")
    a(f"s_mul_i32 s49, s{S_W}, {16*1152}")
    a("s_mul_i32 s50, s5, 3")
    a("s_add_u32 s50, s50, s4")
    def issue(st):
        slot = st % 4
        a(f"s_add_u32 s51, s50, {st}")
        a("s_and_b32 s51, s51, 7")
        a("s_lshl_b32 s52, s51, 7")
        a("s_add_u32 s52, s52, s30")
        a(f"s_mul_i32 s53, s51, {64*1152}")
        a("s_add_u32 s53, s53, s49")
        for n in range(4):
            a(f"s_add_u32 s48, s29, {slot*16384 + n*1024}")
            a("s_mov_b32 m0, s48")
            a(f"s_add_u32 s48, s52, {n*8*1024}")
            a(f"buffer_load_dwordx4 v10, s[{SA}:{SA+3}], s48 offen lds")
        for n in range(6):
            a(f"s_add_u32 s48, s31, {LB + slot*24576 + n*1024}")
            a("s_mov_b32 m0, s48")
            a(f"s_add_u32 s48, s53, {8*(n//3)*1152}")
            a(f"buffer_load_dwordx4 v{11+n%3}, s[{SB}:{SB+3}], s48 offen lds")
    stamp()
    for st in range(3):
        issue(st)
        stamp()
    a(f"s_lshr_b32 s6, s{S_W}, 1")
    a(f"s_and_b32 s7, s{S_W}, 1")
    a("s_lshl_b32 s28, s6, 6")
    a("v_add_u32 v29, s28, v31")
    a("v_and_b32 v28, 7, v31")
    for kk in range(4):
        a(f"v_or_b32 v27, {2*kk}, v30")
        a("v_xor_b32 v27, v27, v28")
        a("v_lshlrev_b32 v27, 4, v27")
        a(f"v_lshl_add_u32 v{1+kk}, v29, 7, v27")
    a("v_bfe_u32 v27, v0, 2, 2")
    a("v_bfe_u32 v26, v0, 4, 1")
    a("v_and_b32 v25, 3, v0")
    a("v_lshrrev_b32 v24, 1, v25")
    a("v_lshl_add_u32 v24, v26, 1, v24")
    a("s_mul_i32 s28, s7, 12")
    a("v_add_u32 v24, s28, v24")
    a("v_lshrrev_b32 v23, 1, v27")
    a("v_lshlrev_b32 v23, 2, v23")
    a("v_lshl_add_u32 v22, v30, 3, v27")
    a("v_mul_u32_u24 v22, 384, v22")
    a("v_and_b32 v21, 1, v25")
    a("v_lshl_add_u32 v22, v21, 3, v22")
    a(f"v_add_u32 v22, {LB}, v22")
    for cb in range(3):
        a(f"v_add_u32 v21, {4*cb}, v24")
        a("v_xor_b32 v21, v21, v23")
        a(f"v_lshl_add_u32 v{5+cb}, v21, 4, v22")
        a(f"v_add_u32 v{14+cb}, 49152, v{5+cb}")
    ACC = 32
    FA, FB = 128, 144
    NST = 8
    for st in range(NST):
        slot = st % 4
        n = 20 if st <= NST-3 else (10 if st == NST-2 else 0)
        a(f"s_waitcnt vmcnt({n})")
        if st in (0, 1, 7): stamp()
        a("s_barrier")
        if st + 3 < NST:
            issue(st + 3)
        def reads(kk):
            bsel = kk & 1
            for rb in range(2):
                f = FA + bsel*8 + rb*4
                a(f"ds_read_b128 v[{f}:{f+3}], v{1+kk} offset:{slot*16384 + rb*4096}")
            for cb in range(3):
                f = FB + bsel*12 + cb*4
                off = (slot & 1)*24576 + kk*16*384
                ar = (5 if slot < 2 else 14) + cb
                a(f"ds_read_b64_tr_b16 v[{f}:{f+1}], v{ar} offset:{off}")
                a(f"ds_read_b64_tr_b16 v[{f+2}:{f+3}], v{ar} offset:{off+4*384}")
        reads(0)
        for kk in range(4):
            if kk + 1 < 4:
                reads(kk + 1)
                a("s_waitcnt lgkmcnt(8)")
            else:
                a("s_waitcnt lgkmcnt(0)")
            bsel = kk & 1
            for rb in range(2):
                for cb in range(3):
                    acc = ACC + 16*(rb*3+cb)
                    cin = "0" if (st == 0 and kk == 0) else f"v[{acc}:{acc+15}]"
                    fa = FA + bsel*8 + rb*4; fb = FB + bsel*12 + cb*4
                    a(f"v_mfma_f32_32x32x16_bf16 v[{acc}:{acc+15}], v[{fa}:{fa+3}], v[{fb}:{fb+3}], {cin}")
    a("s_nop 15")
    a("v_mul_u32_u24 v29, 9216, v30")
    a("v_lshl_add_u32 v29, v31, 2, v29")
    a("s_mul_i32 s28, s7, 384")
    a("s_mul_i32 s48, s6, 147456")
    a("s_add_u32 s28, s28, s48")
    for rb in range(2):
        for i in range(16):
            a(f"s_add_u32 s48, s28, {(32*rb + 8*(i>>2) + (i&3))*2304}")
            for cb in range(3):
                r = ACC + 16*(rb*3+cb) + i
                a(f"buffer_store_dword v{r}, v29, s[{SO}:{SO+3}], s48 offen offset:{cb*128}")
    if PROF == 'O':
        stamp()
        a("s_waitcnt vmcnt(0) lgkmcnt(0)")
        stamp()
        a("s_waitcnt lgkmcnt(0)")
        a(f"s_lshl_b32 s6, s2, 8")
        a(f"s_add_u32 s6, s6, 0x8000000")
        a(f"s_add_u32 s8, s{S_PTR+14}, s6")
        a(f"s_addc_u32 s9, s{S_PTR+15}, 0")
        a(f"s_mov_b32 s10, 256")
        a(f"s_lshl_b32 s6, s{S_W}, 6")
        a("v_mov_b32 v1, s6")
        for i in range(sn[0]):
            a(f"v_mov_b32 v2, s{64+2*i}")
            a(f"buffer_store_dword v2, v1, s[8:11], 0 offen offset:{4*i}")
    a.label("L_oproj_done")
    a("s_endpgm")
    return a.text()

def gen_reduce():
    a = Asm()
    a.lines.append(".globl reduce_kernel\n.p2align 8\n.type reduce_kernel,@function\nreduce_kernel:")
    a("s_cmp_ge_u32 s2, 576")
    a("s_cbranch_scc1 L_red_done")
    a(f"s_load_dwordx4 s[{S_PTR}:{S_PTR+3}], s[0:1], 40")
    a(f"s_load_dwordx2 s[{S_PTR+4}:{S_PTR+5}], s[0:1], 56")
    a("s_lshl_b32 s4, s2, 12")
    a("v_lshl_add_u32 v1, v0, 4, s4")
    a("s_waitcnt lgkmcnt(0)")
    a(f"s_add_u32 s8, s{S_PTR+4}, 0x1000000")
    a(f"s_addc_u32 s9, s{S_PTR+5}, 0")
    a(f"s_mov_b32 s10, {8*2359296}")
    a("s_mov_b32 s11, 0x00020000")
    a(f"s_mov_b32 s12, s{S_PTR}")
    a(f"s_mov_b32 s13, s{S_PTR+1}")
    a("s_mov_b32 s14, 1179648")
    a("s_mov_b32 s15, 0x00020000")
    for k in range(8):
        a(f"s_mov_b32 s16, {k*2359296}")
        a(f"buffer_load_dwordx4 v[{4+4*k}:{7+4*k}], v1, s[8:11], s16 offen")
    for k in range(1, 8):
        a(f"s_waitcnt vmcnt({7-k})")
        for e in range(4):
            a(f"v_add_f32 v{4+e}, v{4+e}, v{4+4*k+e}")
    a("v_cvt_pk_bf16_f32 v2, v4, v5")
    a("v_cvt_pk_bf16_f32 v3, v6, v7")
    a("v_lshrrev_b32 v1, 1, v1")
    a("buffer_store_dwordx2 v[2:3], v1, s[12:15], 0 offen")
    a.label("L_red_done")
    a("s_endpgm")
    return a.text()

HEADER = open('header.txt').read()

def main():
    out = HEADER + gen_attn() + gen_oproj() + gen_reduce()
    out += f""".section .rodata,"a"
.p2align 6
.amdhsa_kernel attn_kernel
  .amdhsa_next_free_vgpr {ACC_OFF+NAGPR}
  .amdhsa_next_free_sgpr 100
  .amdhsa_accum_offset {ACC_OFF}
  .amdhsa_group_segment_fixed_size 0
  .amdhsa_kernarg_size 64
  .amdhsa_user_sgpr_count 2
  .amdhsa_user_sgpr_kernarg_segment_ptr 1
  .amdhsa_system_sgpr_workgroup_id_x 1
.end_amdhsa_kernel
.p2align 6
.amdhsa_kernel oproj_kernel
  .amdhsa_next_free_vgpr 168
  .amdhsa_next_free_sgpr 100
  .amdhsa_accum_offset 168
  .amdhsa_group_segment_fixed_size 0
  .amdhsa_kernarg_size 64
  .amdhsa_user_sgpr_count 2
  .amdhsa_user_sgpr_kernarg_segment_ptr 1
  .amdhsa_system_sgpr_workgroup_id_x 1
.end_amdhsa_kernel
.p2align 6
.amdhsa_kernel reduce_kernel
  .amdhsa_next_free_vgpr 40
  .amdhsa_next_free_sgpr 64
  .amdhsa_accum_offset 40
  .amdhsa_group_segment_fixed_size 0
  .amdhsa_kernarg_size 64
  .amdhsa_user_sgpr_count 2
  .amdhsa_user_sgpr_kernarg_segment_ptr 1
  .amdhsa_system_sgpr_workgroup_id_x 1
.end_amdhsa_kernel
"""
    path = sys.argv[1] if len(sys.argv) > 1 else "standalone__mha_block_cached__near_ridge.s"
    open(path, "w").write(out)

main()
```
